```python
import torch

def _softmax(x, axis=-1):
    return torch.softmax(x, dim=axis)

def _gelu(x):
    return torch.nn.functional.gelu(x, approximate='tanh')

def _silu(x):
    return torch.nn.functional.silu(x)

def _sigmoid(x):
    return torch.sigmoid(x)

def _layernorm(x, axis=-1, eps=1e-05):
    m = x.mean(dim=axis, keepdim=True)
    v = x.var(dim=axis, keepdim=True, unbiased=False)
    return (x - m) / torch.sqrt(v + eps)

def _scatter_add(tgt, idx, src, axis=0):
    return tgt.clone().index_add_(axis, idx, src)

def _segment_sum(src, seg, n):
    out = torch.zeros((n,) + src.shape[1:], dtype=src.dtype)
    return out.index_add_(0, seg, src)

def _pad(x, pw):
    flat = tuple((v for pair in reversed(pw) for v in pair))
    return torch.nn.functional.pad(x, flat)
kernel_name = 'standalone__tree_speculative_verify_tree_attention_over_candidate_token_tree__sampling'

def setup_inputs():

    _w = lambda a: (lambda t: t.to(torch.bfloat16) if t.is_floating_point() else t)(torch.as_tensor(a))
    B, Hq, Hkv, T, C, D = (32, 16, 8, 8, 2048, 256)
    tree_mask = torch.zeros((B, T, T), dtype=float)
    for b in range(B):
        parent = torch.zeros(T, dtype=torch.int64)
        for i in range(1, T):
            parent[i] = int(torch.randint(0, i, (1,)).item())
        for i in range(T):
            j = i
            tree_mask[b, i, j] = 1.0
            while j > 0:
                j = parent[j]
                tree_mask[b, i, j] = 1.0
    return {'q': _w((lambda *s: torch.randn(*s, dtype=torch.bfloat16) * 0.8)(B, Hq, T, D)), 'k_cache': _w((lambda *s: torch.randn(*s, dtype=torch.bfloat16) * 0.8)(B, Hkv, C, D)), 'v_cache': _w((lambda *s: torch.randn(*s, dtype=torch.bfloat16) * 0.05)(B, Hkv, C, D)), 'k_tree': _w((lambda *s: torch.randn(*s, dtype=torch.bfloat16) * 0.8)(B, Hkv, T, D)), 'v_tree': _w((lambda *s: torch.randn(*s, dtype=torch.bfloat16) * 0.05)(B, Hkv, T, D)), 'tree_mask': _w(tree_mask)}

def reference(q, k_cache, v_cache, k_tree, v_tree, tree_mask):
    B, Hq, T, D = q.shape
    Hkv, C = (k_cache.shape[1], k_cache.shape[2])
    rep = Hq // Hkv
    kc = (lambda x, n, axis: torch.repeat_interleave(x, n, dim=axis))(k_cache, rep, axis=1)
    vc = (lambda x, n, axis: torch.repeat_interleave(x, n, dim=axis))(v_cache, rep, axis=1)
    kt = (lambda x, n, axis: torch.repeat_interleave(x, n, dim=axis))(k_tree, rep, axis=1)
    vt = (lambda x, n, axis: torch.repeat_interleave(x, n, dim=axis))(v_tree, rep, axis=1)
    k = torch.concatenate([kc, kt], axis=2)
    v = torch.concatenate([vc, vt], axis=2)
    scale = D ** (-0.5)
    scores = torch.einsum('bhqd,bhkd->bhqk', q, k) * scale
    ctx_mask = torch.ones((B, 1, T, C), dtype=scores.dtype)
    tm = tree_mask[:, None, :, :].clone()
    full_mask = torch.concatenate([ctx_mask, tm], axis=-1)
    scores = scores + (1.0 - full_mask) * -1000000000.0
    p = _softmax(scores, axis=-1)
    return torch.einsum('bhqk,bhkd->bhqd', p, v)
```

```python
import sys
import math

KNAME = "standalone__tree_speculative_verify_tree_attention_over_candidate_token_tree__sampling_kernel"

HEADER = """; Kernarg layout for this problem (72 bytes, ptrs only, base s[0:1]):
"""


class Cfg:
    def __init__(self, **kw):
        self.nw = 4
        self.nsub = 2
        self.ring = 1
        self.kpol = ""
        self.vpol = ""
        self.order = "inter"
        self.rot = 0
        self.kname = KNAME
        self.nocompute = False
        self.stamp = False
        self.vnext = 256
        for k, v in kw.items():
            assert hasattr(self, k), k
            setattr(self, k, v)


class Gen:
    def __init__(self, cfg):
        self.c = cfg
        self.L = []

    def e(self, s):
        self.L.append("    " + s)

    def lab(self, s):
        self.L.append(s + ":")

    def cm(self, s):
        self.L.append("    ; " + s)

    def nop(self, n):
        while n > 0:
            k = min(n, 16)
            self.e(f"s_nop {k-1}")
            n -= k

    def gen(self):
        c = self.c
        NW, NSUB, R = c.nw, c.nsub, c.ring
        SLOT = 8192
        TILE = SLOT * NSUB
        NTILE = (1 << 20) // TILE
        NT = NTILE // NW
        RINGB = R * 2 * TILE
        assert RINGB >= 16384
        SH = NW * RINGB
        STAT = SH + 16384
        LDS = STAT + NW * 128
        assert LDS <= 163840, LDS
        NSLOT = R * 2 * NSUB
        self.LDS = LDS
        GPW = max(1, 4 // NW)

        sKA = 4
        sQ, sK, sV, sKT, sVT, sM, sO = 4, 6, 8, 10, 12, 14, 16
        sDBG = 18
        rK, rV, rX, rO = 20, 24, 28, 32
        sW = 36
        sRing = 37
        sNext = 38
        sT = 39
        sCnt = 40
        sC = 41
        sT2, sT3 = 42, 43
        rM = 44
        sWS = 48
        rD = 52
        sTS = 56

        vLane = 1
        vT = 2
        vDma = 10
        vKa = 14
        vVa = 18
        vM, vL = 26, 27
        vMask = 28
        vAl = 30
        vMc = 31
        vS = 32
        vP = 40
        vE = 44
        vQ = 52
        vV = 84
        vO = 148
        vX = 212

        e, lab, cm, nop = self.e, self.lab, self.cm, self.nop
        kp = (" " + c.kpol) if c.kpol else ""
        vp = (" " + c.vpol) if c.vpol else ""

        def dma_slot(srd, slot_lds_off, glob_off, pol, sbase=sNext):
            for h in range(2):
                e(f"s_add_u32 m0, s{sRing}, {slot_lds_off + h*4096}")
                e(f"s_add_u32 s{sT}, s{sbase}, {glob_off + h*4096}")
                for i in range(4):
                    off = f" offset:{i*1024}" if i else ""
                    e(f"buffer_load_dwordx4 v{vDma+i}, s[{srd}:{srd+3}], s{sT} offen{off}{pol} lds")

        def koff(r, sub):
            return r * 2 * TILE + sub * SLOT

        def voff(r, sub):
            return r * 2 * TILE + TILE + sub * SLOT

        def advance_next():
            if c.order == "inter":
                e(f"s_add_u32 s{sNext}, s{sNext}, {NW*TILE}")
                e(f"s_and_b32 s{sNext}, s{sNext}, {(1<<20)-1}")
            else:
                seg = (1 << 20) // NW
                e(f"s_add_u32 s{sT2}, s{sNext}, {TILE}")
                e(f"s_and_b32 s{sT2}, s{sT2}, {seg-1}")
                e(f"s_and_b32 s{sNext}, s{sNext}, {((1<<20)-1) & ~(seg-1)}")
                e(f"s_or_b32 s{sNext}, s{sNext}, s{sT2}")

        lab(c.kname)
        e(f"s_cmp_ge_u32 s2, 256")
        e(f"s_cbranch_scc1 L_done")
        e(f"s_load_dwordx16 s[4:19], s[0:1], 0")
        if c.stamp:
            e(f"s_load_dwordx2 s[{sWS}:{sWS+1}], s[0:1], 64")
            e(f"s_memrealtime s[{sTS}:{sTS+1}]")
        cm("lane-dependent addresses")
        e(f"v_and_b32 v{vLane}, 63, v0")
        e(f"v_lshrrev_b32 v{vT}, 6, v0")
        e(f"v_lshrrev_b32 v{vT+1}, 5, v{vLane}")
        e(f"v_readfirstlane_b32 s{sW}, v{vT}")
        e(f"v_and_b32 v{vT+2}, 31, v{vLane}")
        e(f"v_lshlrev_b32 v{vT+3}, 1, v{vT+1}")
        e(f"v_xor_b32 v{vT+2}, v{vT+2}, v{vT+3}")
        e(f"v_lshlrev_b32 v{vT+2}, 4, v{vT+2}")
        e(f"v_lshl_add_u32 v{vDma}, v{vT+1}, 9, v{vT+2}")
        for i in range(1, 4):
            e(f"v_xor_b32 v{vDma+i}, {i*64}, v{vDma}")
        e(f"v_and_b32 v{vT}, 15, v{vLane}")
        e(f"v_lshrrev_b32 v{vT+1}, 4, v{vLane}")
        e(f"v_and_b32 v{vT+2}, 7, v{vT}")
        e(f"v_lshlrev_b32 v{vT+2}, 5, v{vT+2}")
        e(f"v_lshlrev_b32 v{vT+3}, 4, v{vT+1}")
        e(f"v_xor_b32 v{vT+2}, v{vT+2}, v{vT+3}")
        e(f"v_lshl_add_u32 v{vKa}, v{vT}, 9, v{vT+2}")
        for s in range(1, 4):
            e(f"v_xor_b32 v{vKa+s}, {s*64}, v{vKa}")
        e(f"v_lshrrev_b32 v{vT}, 2, v{vLane}")
        e(f"v_and_b32 v{vT+1}, 7, v{vT}")
        e(f"v_lshlrev_b32 v{vT+1}, 5, v{vT+1}")
        e(f"v_and_b32 v{vT+2}, 3, v{vLane}")
        e(f"v_lshlrev_b32 v{vT+2}, 3, v{vT+2}")
        e(f"v_or_b32 v{vT+1}, v{vT+1}, v{vT+2}")
        e(f"v_lshl_add_u32 v{vVa}, v{vT}, 9, v{vT+1}")
        for u in range(1, 8):
            e(f"v_xor_b32 v{vVa+u}, {u*32}, v{vVa}")
        e(f"v_and_b32 v{vT}, 7, v{vLane}")
        e(f"v_lshlrev_b32 v{vT}, 4, v{vT}")
        e(f"v_bfe_u32 v{vT+1}, v{vLane}, 4, 1")
        e(f"v_lshl_add_u32 v{vT+4}, v{vT+1}, 3, v{vT}")
        e(f"s_mul_i32 s{sRing}, s{sW}, {RINGB}")
        if c.order == "inter":
            e(f"s_mul_i32 s{sNext}, s{sW}, {TILE}")
            if c.rot:
                e(f"s_mul_i32 s{sT2}, s2, {c.rot*TILE}")
                e(f"s_add_u32 s{sNext}, s{sNext}, s{sT2}")
                e(f"s_and_b32 s{sNext}, s{sNext}, {(1<<20)-1}")
        else:
            seg = (1 << 20) // NW
            e(f"s_mul_i32 s{sNext}, s{sW}, {seg}")
            if c.rot:
                e(f"s_mul_i32 s{sT2}, s2, {c.rot*TILE}")
                e(f"s_and_b32 s{sT2}, s{sT2}, {seg-1}")
                e(f"s_add_u32 s{sNext}, s{sNext}, s{sT2}")
        e(f"s_mov_b32 s{sC}, {hex(f32bits(0.0625*math.log2(math.e)))}")
        e(f"s_lshl_b32 s{sT2}, s2, 20")
        e(f"s_lshr_b32 s{sT3}, s2, 12")
        e("s_waitcnt lgkmcnt(0)")
        cm("SRDs")
        e(f"s_add_u32 s{rK}, s{sK}, s{sT2}")
        e(f"s_addc_u32 s{rK+1}, s{sK+1}, s{sT3}")
        e(f"s_mov_b32 s{rK+2}, {1<<20}")
        e(f"s_mov_b32 s{rK+3}, 0x20000")
        e(f"s_add_u32 s{rV}, s{sV}, s{sT2}")
        e(f"s_addc_u32 s{rV+1}, s{sV+1}, s{sT3}")
        e(f"s_mov_b32 s{rV+2}, {1<<20}")
        e(f"s_mov_b32 s{rV+3}, 0x20000")
        cm("first K slot")
        dma_slot(rK, koff(0, 0), 0, kp)
        cm("shared region: group 0,1 = Q rows 0-7, 8-15; 2 = tree K; 3 = tree V")
        for gi in range(GPW):
            if GPW == 1:
                e(f"s_and_b32 s{sT2}, s{sW}, 3")
            else:
                e(f"s_mul_i32 s{sT2}, s{sW}, {GPW}")
                e(f"s_add_u32 s{sT2}, s{sT2}, {gi}")
            e(f"s_lshl_b32 s{sT3}, s2, 13")
            e(f"s_add_u32 s{rX}, s{sQ}, s{sT3}")
            e(f"s_addc_u32 s{rX+1}, s{sQ+1}, 0")
            e(f"s_lshl_b32 s{sT3}, s2, 12")
            e(f"s_cmp_eq_u32 s{sT2}, 2")
            e(f"s_cselect_b32 s{rO}, s{sKT}, s{sVT}")
            e(f"s_cselect_b32 s{rO+1}, s{sKT+1}, s{sVT+1}")
            e(f"s_add_u32 s{rO}, s{rO}, s{sT3}")
            e(f"s_addc_u32 s{rO+1}, s{rO+1}, 0")
            e(f"s_cmp_lt_u32 s{sT2}, 2")
            e(f"s_cselect_b32 s{rX}, s{rX}, s{rO}")
            e(f"s_cselect_b32 s{rX+1}, s{rX+1}, s{rO+1}")
            e(f"s_mov_b32 s{rX+2}, 8192")
            e(f"s_cselect_b32 s{rX+2}, s{rX+2}, 4096")
            e(f"s_mov_b32 s{rX+3}, 0x20000")
            e(f"s_cmp_eq_u32 s{sT2}, 1")
            e(f"s_cselect_b32 s{sT}, 4096, 0")
            e(f"s_lshl_b32 s{sT2}, s{sT2}, 12")
            e(f"s_add_u32 m0, s{sT2}, {SH}")
            e("s_nop 0")
            for i in range(4):
                off = f" offset:{i*1024}" if i else ""
                e(f"buffer_load_dwordx4 v{vDma+i}, s[{rX}:{rX+3}], s{sT} offen{off} lds")
        cm("tree mask (8 bytes per lane)")
        e(f"s_lshr_b32 s{sT2}, s2, 3")
        e(f"s_lshl_b32 s{sT2}, s{sT2}, 7")
        e(f"s_add_u32 s{rM}, s{sM}, s{sT2}")
        e(f"s_addc_u32 s{rM+1}, s{sM+1}, 0")
        e(f"s_mov_b32 s{rM+2}, 128")
        e(f"s_mov_b32 s{rM+3}, 0x20000")
        e(f"buffer_load_dwordx2 v[{vMask}:{vMask+1}], v{vT+4}, s[{rM}:{rM+3}], 0 offen")
        cm("rest of the ring")
        for r in range(R):
            for sub in range(NSUB):
                if not (r == 0 and sub == 0):
                    dma_slot(rK, koff(r, sub), sub * SLOT, kp)
            for sub in range(NSUB):
                dma_slot(rV, voff(r, sub), sub * SLOT, vp)
            advance_next()
        cm("output SRD")
        e(f"s_lshl_b32 s{sT3}, s2, 13")
        e(f"s_add_u32 s{rO}, s{sO}, s{sT3}")
        e(f"s_addc_u32 s{rO+1}, s{sO+1}, 0")
        e(f"s_mov_b32 s{rO+2}, 8192")
        e(f"s_mov_b32 s{rO+3}, 0x20000")
        cm("state init")
        for i in range(64):
            e(f"v_mov_b32 v{vO+i}, 0")
        e(f"v_mov_b32 v{vM}, 0xff800000")
        e(f"v_mov_b32 v{vL}, 0")
        wait0 = min(63, (NSLOT - 1) * 8)
        e(f"s_waitcnt vmcnt({wait0})")
        e("s_barrier")
        if c.stamp:
            e(f"s_memrealtime s[{sTS+2}:{sTS+3}]")
        cm("Q fragments")
        for s in range(4):
            e(f"v_add_u32 v{vX+s}, {SH}, v{vKa+s}")
        for s in range(8):
            e(f"ds_read_b128 v[{vQ+4*s}:{vQ+4*s+3}], v{vX+(s&3)} offset:{(s>>2)*256}")

        def softmax_pv(nS, tree=False):
            if nS == 8:
                e(f"v_max3_f32 v{vT}, v{vS}, v{vS+1}, v{vS+2}")
                e(f"v_max3_f32 v{vT+1}, v{vS+3}, v{vS+4}, v{vS+5}")
                e(f"v_max3_f32 v{vT}, v{vT}, v{vS+6}, v{vS+7}")
                e(f"v_max_f32 v{vT}, v{vT}, v{vT+1}")
            else:
                e(f"v_max3_f32 v{vT}, v{vS}, v{vS+1}, v{vS+2}")
                e(f"v_max_f32 v{vT}, v{vT}, v{vS+3}")
            e(f"v_mov_b32 v{vT+1}, v{vT}")
            nop(2)
            e(f"v_permlane32_swap_b32 v{vT}, v{vT+1}")
            nop(1)
            e(f"v_max_f32 v{vT}, v{vT}, v{vT+1}")
            e(f"v_mov_b32 v{vT+1}, v{vT}")
            nop(2)
            e(f"v_permlane16_swap_b32 v{vT}, v{vT+1}")
            nop(1)
            e(f"v_max3_f32 v{vT}, v{vT}, v{vT+1}, v{vM}")
            e(f"v_mul_f32 v{vMc}, s{sC}, v{vT}")
            e(f"v_fma_f32 v{vAl}, v{vM}, s{sC}, -v{vMc}")
            e(f"v_mov_b32 v{vM}, v{vT}")
            for i in range(nS):
                e(f"v_fma_f32 v{vE+i}, v{vS+i}, s{sC}, -v{vMc}")
            e(f"v_exp_f32 v{vAl}, v{vAl}")
            for i in range(nS):
                e(f"v_exp_f32 v{vE+i}, v{vE+i}")
            nop(1)
            e(f"v_mul_f32 v{vL}, v{vL}, v{vAl}")
            for i in range(0, nS, 2):
                e(f"v_cvt_pk_bf16_f32 v{vP+i//2}, v{vE+i}, v{vE+i+1}")
            e(f"v_add_f32 v{vT}, v{vE}, v{vE+1}")
            e(f"v_add_f32 v{vT+1}, v{vE+2}, v{vE+3}")
            if nS == 8:
                e(f"v_add_f32 v{vT+2}, v{vE+4}, v{vE+5}")
                e(f"v_add_f32 v{vT+3}, v{vE+6}, v{vE+7}")
                e(f"v_add_f32 v{vT}, v{vT}, v{vT+2}")
                e(f"v_add_f32 v{vT+1}, v{vT+1}, v{vT+3}")
            e(f"v_add_f32 v{vT}, v{vT}, v{vT+1}")
            e(f"v_add_f32 v{vL}, v{vL}, v{vT}")
            for i in range(0, 64, 2):
                e(f"v_pk_mul_f32 v[{vO+i}:{vO+i+1}], v[{vO+i}:{vO+i+1}], v[{vAl}:{vAl+1}] op_sel_hi:[1,0]")

        def k_reads(off, dst):
            for s in range(8):
                o = off + (s >> 2) * 256
                e(f"ds_read_b128 v[{dst+4*s}:{dst+4*s+3}], v{vKa+(s&3)} offset:{o}")

        def qk_mfma(src, acc):
            for s in range(8):
                cin = "0" if s == 0 else f"v[{acc}:{acc+3}]"
                e(f"v_mfma_f32_16x16x32_bf16 v[{acc}:{acc+3}], v[{src+4*s}:{src+4*s+3}], v[{vQ+4*s}:{vQ+4*s+3}], {cin}")

        def v_reads(off, sub, addr=vVa):
            for t in range(16):
                o = off + (t >> 3) * 256
                d = vV + 4 * t + 2 * sub
                e(f"ds_read_b64_tr_b16 v[{d}:{d+1}], v{addr+(t&7)} offset:{o}")

        def pv_mfma(k32):
            for t in range(16):
                o = vO + 4 * t
                if k32:
                    e(f"v_mfma_f32_16x16x32_bf16 v[{o}:{o+3}], v[{vV+4*t}:{vV+4*t+3}], v[{vP}:{vP+3}], v[{o}:{o+3}]")
                else:
                    e(f"v_mfma_f32_16x16x16_bf16 v[{o}:{o+3}], v[{vV+4*t}:{vV+4*t+1}], v[{vP}:{vP+1}], v[{o}:{o+3}]")

        cm("tree tile: wave 0 only")
        e(f"s_cmp_lg_u32 s{sW}, 0")
        e("s_cbranch_scc1 L_notree")
        if not c.nocompute:
            for s in range(4):
                e(f"v_add_u32 v{vX+s}, {SH+8192}, v{vKa+s}")
            for s in range(8):
                e(f"ds_read_b128 v[{vV+4*s}:{vV+4*s+3}], v{vX+(s&3)} offset:{(s>>2)*256}")
            e("s_waitcnt lgkmcnt(0)")
            qk_mfma(vV, vS)
            for u in range(8):
                e(f"v_and_b32 v{vX+u}, 0xfff, v{vVa+u}")
            for u in range(8):
                e(f"v_add_u32 v{vX+u}, {SH+12288}, v{vX+u}")
            e(f"v_lshlrev_b32 v{vE}, 16, v{vMask}")
            e(f"v_and_b32 v{vE+1}, 0xffff0000, v{vMask}")
            e(f"v_lshlrev_b32 v{vE+2}, 16, v{vMask+1}")
            e(f"v_and_b32 v{vE+3}, 0xffff0000, v{vMask+1}")
            e(f"s_mov_b32 s{sT2}, {hex(f32bits(-1.6e10))}")
            for i in range(4):
                e(f"v_sub_f32 v{vE+i}, 1.0, v{vE+i}")
            v_reads(0, 0, addr=vX)
            e(f"v_cmp_gt_u32 vcc, 32, v{vLane}")
            e(f"v_mov_b32 v{vT+3}, 0xff800000")
            nop(4)
            for i in range(4):
                e(f"v_fma_f32 v{vS+i}, v{vE+i}, s{sT2}, v{vS+i}")
            for i in range(4):
                e(f"v_cndmask_b32 v{vS+i}, v{vT+3}, v{vS+i}, vcc")
            softmax_pv(4, tree=True)
            e("s_waitcnt lgkmcnt(0)")
            pv_mfma(False)
        lab("L_notree")
        cm("ring-relative addresses")
        for s in range(4):
            e(f"v_add_u32 v{vKa+s}, s{sRing}, v{vKa+s}")
        for u in range(8):
            e(f"v_add_u32 v{vVa+u}, s{sRing}, v{vVa+u}")
        e("s_waitcnt lgkmcnt(0)")

        def tile(r, refill, outstanding):
            o = outstanding
            for sub in range(NSUB):
                e(f"s_waitcnt vmcnt({min(63, (o-1)*8)})")
                if not c.nocompute:
                    k_reads(koff(r, sub), vV + 32 * sub)
                    e("s_waitcnt lgkmcnt(0)")
                if refill:
                    dma_slot(rK, koff(r, sub), sub * SLOT, kp)
                else:
                    o -= 1
                if not c.nocompute:
                    qk_mfma(vV + 32 * sub, vS + 4 * sub)
            if not c.nocompute:
                nop(8)
                softmax_pv(4 * NSUB)
            for sub in range(NSUB):
                e(f"s_waitcnt vmcnt({min(63, (o-1)*8)})")
                if not c.nocompute:
                    v_reads(voff(r, sub), sub)
                    e("s_waitcnt lgkmcnt(0)")
                if refill:
                    dma_slot(rV, voff(r, sub), sub * SLOT, vp)
                else:
                    o -= 1
            if refill:
                advance_next()
            if not c.nocompute:
                pv_mfma(NSUB == 2)
            return o

        nloop = (NT - R) // R
        assert nloop * R == NT - R
        e(f"s_mov_b32 s{sCnt}, {nloop}")
        lab("L_loop")
        for r in range(R):
            tile(r, True, NSLOT)
        e(f"s_sub_u32 s{sCnt}, s{sCnt}, 1")
        e(f"s_cmp_lg_u32 s{sCnt}, 0")
        e("s_cbranch_scc1 L_loop")
        o = NSLOT
        for r in range(R):
            o = tile(r, False, o)
        assert o == 0
        if c.stamp:
            e(f"s_memrealtime s[{sTS+4}:{sTS+5}]")
        cm("merge the per-wave partials")
        e(f"v_mov_b32 v{vT+1}, v{vL}")
        nop(2)
        e(f"v_permlane32_swap_b32 v{vL}, v{vT+1}")
        nop(1)
        e(f"v_add_f32 v{vL}, v{vL}, v{vT+1}")
        e(f"v_mov_b32 v{vT+1}, v{vL}")
        nop(2)
        e(f"v_permlane16_swap_b32 v{vL}, v{vT+1}")
        nop(1)
        e(f"v_add_f32 v{vL}, v{vL}, v{vT+1}")
        e(f"v_and_b32 v{vT}, 15, v{vLane}")
        e(f"s_lshl_b32 s{sT2}, s{sW}, 7")
        e(f"s_add_u32 s{sT2}, s{sT2}, {STAT}")
        e(f"v_lshlrev_b32 v{vT+1}, 3, v{vT}")
        e(f"v_add_u32 v{vT+1}, s{sT2}, v{vT+1}")
        e(f"ds_write_b64 v{vT+1}, v[{vM}:{vM+1}]")
        e(f"v_lshrrev_b32 v{vT+1}, 4, v{vLane}")
        e(f"v_lshrrev_b32 v{vT+2}, 1, v{vT+1}")
        e(f"v_and_b32 v{vT+3}, 7, v{vT}")
        e(f"v_xor_b32 v{vT+2}, v{vT+2}, v{vT+3}")
        e(f"v_and_b32 v{vT+1}, 1, v{vT+1}")
        e(f"v_lshl_add_u32 v{vT+2}, v{vT+1}, 4, v{vT+2}")
        e(f"v_lshlrev_b32 v{vT+2}, 4, v{vT+2}")
        e(f"v_lshl_add_u32 v{vT+2}, v{vT}, 10, v{vT+2}")
        e(f"v_add_u32 v{vX}, s{sRing}, v{vT+2}")
        for j in range(1, 4):
            e(f"v_xor_b32 v{vX+j}, {j*32}, v{vX}")
        nop(4)
        for t in range(16):
            o_ = ((t >> 2) & 1) * 128 + (t >> 3) * 512
            e(f"ds_write_b128 v{vX+(t&3)}, v[{vO+4*t}:{vO+4*t+3}] offset:{o_}")
        e("s_waitcnt lgkmcnt(0)")
        e("s_barrier")
        RPW = 16 // NW
        LPR = 64 // RPW
        NP = 32 // LPR
        lg = int(math.log2(LPR))
        e(f"v_lshrrev_b32 v{vT}, {lg}, v{vLane}")
        e(f"s_mul_i32 s{sT2}, s{sW}, {RPW}")
        e(f"v_add_u32 v{vT}, s{sT2}, v{vT}")
        e(f"v_and_b32 v{vT+1}, {LPR-1}, v{vLane}")
        e(f"v_lshlrev_b32 v{vT+2}, 3, v{vT}")
        e(f"v_add_u32 v{vT+2}, {STAT}, v{vT+2}")
        vSt = vE
        vSt = vQ
        for w in range(NW):
            e(f"ds_read_b64 v[{vSt+2*w}:{vSt+2*w+1}], v{vT+2} offset:{w*128}")
        e(f"v_and_b32 v{vT+3}, 7, v{vT}")
        if LPR <= 16:
            e(f"v_xor_b32 v{vT+3}, v{vT+3}, v{vT+1}")
            e(f"v_lshlrev_b32 v{vT+3}, 4, v{vT+3}")
        else:
            e(f"v_and_b32 v{vT+4}, 15, v{vT+1}")
            e(f"v_xor_b32 v{vT+3}, v{vT+3}, v{vT+4}")
            e(f"v_lshlrev_b32 v{vT+3}, 4, v{vT+3}")
            e(f"v_lshrrev_b32 v{vT+4}, 4, v{vT+1}")
            e(f"v_lshl_add_u32 v{vT+3}, v{vT+4}, 9, v{vT+3}")
        e(f"v_lshl_add_u32 v{vX}, v{vT}, 10, v{vT+3}")
        pool = list(range(vV, vV + 64)) + list(range(vO, vO + 64))
        need = NW * NP * 8
        assert need <= 128
        addr_hi = {}
        for w in range(NW):
            base = w * RINGB
            blk = base // 65536
            if blk not in addr_hi:
                a = vX + 1 + blk
                e(f"v_add_u32 v{a}, {blk*65536}, v{vX}")
                addr_hi[blk] = a
        for w in range(NW):
            base = w * RINGB
            blk = base // 65536
            for j in range(NP):
                a0 = LPR * j
                pos = (a0 >> 4) * 32 * 16 + (a0 & 15) * 16
                for h in range(2):
                    d = pool[(w * NP + j) * 8 + 4 * h]
                    off = base - blk * 65536 + pos + h * 256
                    assert off < 65536
                    e(f"ds_read_b128 v[{d}:{d+3}], v{addr_hi[blk]} offset:{off}")
        e(f"v_lshlrev_b32 v{vT+5}, 4, v{vT+1}")
        e(f"v_lshl_add_u32 v{vT+5}, v{vT}, 9, v{vT+5}")
        e(f"s_waitcnt lgkmcnt({min(15, NW*NP*2)})")
        e(f"v_mov_b32 v{vT}, v{vSt}")
        for w in range(1, NW):
            e(f"v_max_f32 v{vT}, v{vT}, v{vSt+2*w}")
        e(f"v_mul_f32 v{vMc}, s{sC}, v{vT}")
        for w in range(NW):
            e(f"v_fma_f32 v{vSt+2*w}, v{vSt+2*w}, s{sC}, -v{vMc}")
        for w in range(NW):
            e(f"v_exp_f32 v{vSt+2*w}, v{vSt+2*w}")
        nop(1)
        e(f"v_mul_f32 v{vT}, v{vSt}, v{vSt+1}")
        for w in range(1, NW):
            e(f"v_fma_f32 v{vT}, v{vSt+2*w}, v{vSt+2*w+1}, v{vT}")
        e(f"v_rcp_f32 v{vT}, v{vT}")
        nop(1)
        for w in range(NW):
            e(f"v_mul_f32 v{vSt+2*w}, v{vSt+2*w}, v{vT}")
        e("s_waitcnt lgkmcnt(0)")
        for j in range(NP):
            for x in range(8):
                d0 = pool[j * 8 + x]
                e(f"v_mul_f32 v{d0}, v{d0}, v{vSt}")
            for w in range(1, NW):
                for x in range(8):
                    d0 = pool[j * 8 + x]
                    d = pool[(w * NP + j) * 8 + x]
                    e(f"v_fma_f32 v{d0}, v{d}, v{vSt+2*w}, v{d0}")
            for x in range(4):
                e(f"v_cvt_pk_bf16_f32 v{vS+4*(j&1)+x}, v{pool[j*8+2*x]}, v{pool[j*8+2*x+1]}")
            b = vS + 4 * (j & 1)
            off = f" offset:{j*LPR*16}" if j else ""
            e(f"buffer_store_dwordx4 v[{b}:{b+3}], v{vT+5}, s[{rO}:{rO+3}], 0 offen{off}")
            if NP > 2:
                nop(2)
        if c.stamp:
            e("s_waitcnt vmcnt(0)")
            e(f"s_memrealtime s[{sTS+6}:{sTS+7}]")
            e(f"s_getreg_b32 s{sT2}, hwreg(HW_REG_XCC_ID)")
            e(f"s_getreg_b32 s{sT3}, hwreg(HW_REG_HW_ID)")
            e("s_waitcnt lgkmcnt(0)")
            e(f"s_mov_b32 s{rD}, s{sWS}")
            e(f"s_mov_b32 s{rD+1}, s{sWS+1}")
            e(f"s_mov_b32 s{rD+2}, {256*NW*64}")
            e(f"s_mov_b32 s{rD+3}, 0x20000")
            e(f"s_mul_i32 s{sT}, s2, {NW*64}")
            e(f"s_lshl_b32 s{sCnt}, s{sW}, 6")
            e(f"s_add_u32 s{sT}, s{sT}, s{sCnt}")
            for i in range(8):
                e(f"v_mov_b32 v{vV+i}, s{sTS+i}")
            e(f"v_mov_b32 v{vV+8}, s{sT2}")
            e(f"v_mov_b32 v{vV+9}, s{sT3}")
            e(f"v_mov_b32 v{vV+10}, 0")
            e(f"v_mov_b32 v{vV+11}, 0")
            e(f"v_mov_b32 v{vT}, 0")
            e(f"v_cmp_eq_u32 vcc, 0, v{vLane}")
            nop(2)
            e(f"s_and_saveexec_b64 s[{sTS}:{sTS+1}], vcc")
            e(f"buffer_store_dwordx4 v[{vV}:{vV+3}], v{vT}, s[{rD}:{rD+3}], s{sT} offen")
            e(f"buffer_store_dwordx4 v[{vV+4}:{vV+7}], v{vT}, s[{rD}:{rD+3}], s{sT} offen offset:16")
            e(f"buffer_store_dwordx4 v[{vV+8}:{vV+11}], v{vT}, s[{rD}:{rD+3}], s{sT} offen offset:32")
        lab("L_done")
        e("s_endpgm")

        body = "\n".join(self.L)
        out = HEADER
        out += f"; @launch grid=(256,1,1) block=({NW*64},1,1) lds={LDS}\n"
        out += f""".amdgcn_target "amdgcn-amd-amdhsa--gfx950"
.text
.globl {c.kname}
.p2align 8
.type {c.kname},@function
{body}
.section .rodata,"a"
.p2align 6
.amdhsa_kernel {c.kname}
  .amdhsa_next_free_vgpr {c.vnext}
  .amdhsa_next_free_sgpr 102
  .amdhsa_accum_offset {c.vnext}
  .amdhsa_group_segment_fixed_size 0
  .amdhsa_kernarg_size 72
  .amdhsa_user_sgpr_count 2
  .amdhsa_user_sgpr_kernarg_segment_ptr 1
  .amdhsa_system_sgpr_workgroup_id_x 1
.end_amdhsa_kernel
"""
        return out


def f32bits(x):
    import struct
    return struct.unpack("<I", struct.pack("<f", x))[0]


def parse(args):
    kw = {}
    for a in args:
        k, v = a.split("=", 1)
        if k in ("nw", "nsub", "ring", "rot", "vnext"):
            v = int(v)
        elif k in ("nocompute", "stamp"):
            v = bool(int(v))
        else:
            v = v.replace("+", " ")
        kw[k] = v
    return Cfg(**kw)


if __name__ == "__main__":
    out = sys.argv[1]
    cfg = parse(sys.argv[2:])
    open(out, "w").write(Gen(cfg).gen())
```

```python
import sys
import math

KNAME = "standalone__tree_speculative_verify_tree_attention_over_candidate_token_tree__sampling_kernel"

HEADER = """; Kernarg layout for this problem (72 bytes, ptrs only, base s[0:1]):
"""


class Cfg:
    def __init__(self, **kw):
        self.nw = 4
        self.nsub = 2
        self.ring = 1
        self.kpol = ""
        self.vpol = ""
        self.order = "inter"
        self.rot = 0
        self.kname = KNAME
        self.nocompute = False
        self.stamp = False
        self.vnext = 256
        self.xmask = 0
        self.prog = False
        self.pd = 0
        for k, v in kw.items():
            assert hasattr(self, k), k
            setattr(self, k, v)


class Gen:
    def __init__(self, cfg):
        self.c = cfg
        self.L = []

    def e(self, s):
        self.L.append("    " + s)

    def lab(self, s):
        self.L.append(s + ":")

    def cm(self, s):
        self.L.append("    ; " + s)

    def nop(self, n):
        while n > 0:
            k = min(n, 16)
            self.e(f"s_nop {k-1}")
            n -= k

    def gen(self):
        c = self.c
        NW, NSUB, R = c.nw, c.nsub, c.ring
        SLOT = 8192
        TILE = SLOT * NSUB
        NTILE = (1 << 20) // TILE
        NT = NTILE // NW
        RINGB = R * 2 * TILE
        assert RINGB >= 16384
        SH = NW * RINGB
        STAT = SH + 16384
        LDS = STAT + NW * 128
        assert LDS <= 163840, LDS
        NSLOT = R * 2 * NSUB
        self.LDS = LDS
        GPW = max(1, 4 // NW)

        sKA = 4
        sQ, sK, sV, sKT, sVT, sM, sO = 4, 6, 8, 10, 12, 14, 16
        sDBG = 18
        rK, rV, rX, rO = 20, 24, 28, 32
        sW = 36
        sRing = 37
        sNext = 38
        sT = 39
        sCnt = 40
        sC = 41
        sT2, sT3 = 42, 43
        rM = 44
        sSeg = 50
        sWS = 48
        rD = 52
        sTS = 56

        vLane = 1
        vT = 2
        vDma = 10
        vKa = 14
        vVa = 18
        vM, vL = 26, 27
        vMask = 28
        vAl = 30
        vMc = 31
        vS = 32
        vP = 40
        vE = 44
        vQ = 52
        vV = 84
        vO = 148
        vProg = 230
        vX = 212

        e, lab, cm, nop = self.e, self.lab, self.cm, self.nop
        kp = (" " + c.kpol) if c.kpol else ""
        vp = (" " + c.vpol) if c.vpol else ""

        PD = c.pd if c.pd else NSLOT
        assert 1 <= PD <= NSLOT
        SPT = 2 * NSUB
        SEG = (1 << 20) // NW
        TSTEP = NW * TILE if c.order == "inter" else TILE

        def dma_seq(j):
            tl, p = divmod(j, SPT)
            sub = p % NSUB
            srd, pol = (rK, kp) if p < NSUB else (rV, vp)
            lds = (j % NSLOT) * SLOT
            for h in range(2):
                g = tl * TSTEP + sub * SLOT + h * 4096
                e(f"s_add_u32 s{sT}, s{sNext}, {g}")
                if c.rot:
                    if c.order == "inter":
                        e(f"s_and_b32 s{sT}, s{sT}, {(1<<20)-1}")
                    else:
                        e(f"s_and_b32 s{sT}, s{sT}, {SEG-1}")
                        e(f"s_add_u32 s{sT}, s{sT}, s{sSeg}")
                e(f"s_add_u32 m0, s{sRing}, {lds + h*4096}")
                e("s_nop 0")
                for i in range(4):
                    off = f" offset:{i*1024}" if i else ""
                    e(f"buffer_load_dwordx4 v{vDma+i}, s[{srd}:{srd+3}], s{sT} offen{off}{pol} lds")

        def slot_lds(j):
            return (j % NSLOT) * SLOT

        lab(c.kname)
        e(f"s_cmp_ge_u32 s2, 256")
        e(f"s_cbranch_scc1 L_done")
        if c.xmask:
            e(f"s_getreg_b32 s3, hwreg(HW_REG_XCC_ID, 0, 4)")
            e(f"s_lshr_b32 s3, {c.xmask}, s3")
            e(f"s_and_b32 s3, s3, 1")
            e(f"s_cmp_eq_u32 s3, 0")
            e(f"s_cbranch_scc1 L_done")
        e(f"s_load_dwordx16 s[4:19], s[0:1], 0")
        if c.stamp:
            e(f"s_load_dwordx2 s[{sWS}:{sWS+1}], s[0:1], 64")
            e(f"s_memrealtime s[{sTS}:{sTS+1}]")
        cm("lane-dependent addresses")
        e(f"v_and_b32 v{vLane}, 63, v0")
        e(f"v_lshrrev_b32 v{vT}, 6, v0")
        e(f"v_lshrrev_b32 v{vT+1}, 5, v{vLane}")
        e(f"v_readfirstlane_b32 s{sW}, v{vT}")
        e(f"v_and_b32 v{vT+2}, 31, v{vLane}")
        e(f"v_lshlrev_b32 v{vT+3}, 1, v{vT+1}")
        e(f"v_xor_b32 v{vT+2}, v{vT+2}, v{vT+3}")
        e(f"v_lshlrev_b32 v{vT+2}, 4, v{vT+2}")
        e(f"v_lshl_add_u32 v{vDma}, v{vT+1}, 9, v{vT+2}")
        for i in range(1, 4):
            e(f"v_xor_b32 v{vDma+i}, {i*64}, v{vDma}")
        e(f"v_and_b32 v{vT}, 15, v{vLane}")
        e(f"v_lshrrev_b32 v{vT+1}, 4, v{vLane}")
        e(f"v_and_b32 v{vT+2}, 7, v{vT}")
        e(f"v_lshlrev_b32 v{vT+2}, 5, v{vT+2}")
        e(f"v_lshlrev_b32 v{vT+3}, 4, v{vT+1}")
        e(f"v_xor_b32 v{vT+2}, v{vT+2}, v{vT+3}")
        e(f"v_lshl_add_u32 v{vKa}, v{vT}, 9, v{vT+2}")
        for s in range(1, 4):
            e(f"v_xor_b32 v{vKa+s}, {s*64}, v{vKa}")
        e(f"v_lshrrev_b32 v{vT}, 2, v{vLane}")
        e(f"v_and_b32 v{vT+1}, 7, v{vT}")
        e(f"v_lshlrev_b32 v{vT+1}, 5, v{vT+1}")
        e(f"v_and_b32 v{vT+2}, 3, v{vLane}")
        e(f"v_lshlrev_b32 v{vT+2}, 3, v{vT+2}")
        e(f"v_or_b32 v{vT+1}, v{vT+1}, v{vT+2}")
        e(f"v_lshl_add_u32 v{vVa}, v{vT}, 9, v{vT+1}")
        for u in range(1, 8):
            e(f"v_xor_b32 v{vVa+u}, {u*32}, v{vVa}")
        e(f"v_and_b32 v{vT}, 7, v{vLane}")
        e(f"v_lshlrev_b32 v{vT}, 4, v{vT}")
        e(f"v_bfe_u32 v{vT+1}, v{vLane}, 4, 1")
        e(f"v_lshl_add_u32 v{vT+4}, v{vT+1}, 3, v{vT}")
        e(f"s_mul_i32 s{sRing}, s{sW}, {RINGB}")
        if c.order == "inter":
            e(f"s_mul_i32 s{sNext}, s{sW}, {TILE}")
            if c.rot:
                e(f"s_mul_i32 s{sT2}, s2, {c.rot*TILE}")
                e(f"s_add_u32 s{sNext}, s{sNext}, s{sT2}")
        else:
            if c.rot:
                e(f"s_mul_i32 s{sSeg}, s{sW}, {SEG}")
                e(f"s_mul_i32 s{sNext}, s2, {c.rot*TILE}")
            else:
                e(f"s_mul_i32 s{sNext}, s{sW}, {SEG}")
        e(f"s_mov_b32 s{sC}, {hex(f32bits(0.0625*math.log2(math.e)))}")
        e(f"s_lshl_b32 s{sT2}, s2, 20")
        e(f"s_lshr_b32 s{sT3}, s2, 12")
        e("s_waitcnt lgkmcnt(0)")
        cm("SRDs")
        e(f"s_add_u32 s{rK}, s{sK}, s{sT2}")
        e(f"s_addc_u32 s{rK+1}, s{sK+1}, s{sT3}")
        e(f"s_mov_b32 s{rK+2}, {1<<20}")
        e(f"s_mov_b32 s{rK+3}, 0x20000")
        e(f"s_add_u32 s{rV}, s{sV}, s{sT2}")
        e(f"s_addc_u32 s{rV+1}, s{sV+1}, s{sT3}")
        e(f"s_mov_b32 s{rV+2}, {1<<20}")
        e(f"s_mov_b32 s{rV+3}, 0x20000")
        cm("first K slot")
        dma_seq(0)
        cm("shared region: group 0,1 = Q rows 0-7, 8-15; 2 = tree K; 3 = tree V")
        for gi in range(GPW):
            if GPW == 1:
                e(f"s_and_b32 s{sT2}, s{sW}, 3")
            else:
                e(f"s_mul_i32 s{sT2}, s{sW}, {GPW}")
                e(f"s_add_u32 s{sT2}, s{sT2}, {gi}")
            e(f"s_lshl_b32 s{sT3}, s2, 13")
            e(f"s_add_u32 s{rX}, s{sQ}, s{sT3}")
            e(f"s_addc_u32 s{rX+1}, s{sQ+1}, 0")
            e(f"s_lshl_b32 s{sT3}, s2, 12")
            e(f"s_cmp_eq_u32 s{sT2}, 2")
            e(f"s_cselect_b32 s{rO}, s{sKT}, s{sVT}")
            e(f"s_cselect_b32 s{rO+1}, s{sKT+1}, s{sVT+1}")
            e(f"s_add_u32 s{rO}, s{rO}, s{sT3}")
            e(f"s_addc_u32 s{rO+1}, s{rO+1}, 0")
            e(f"s_cmp_lt_u32 s{sT2}, 2")
            e(f"s_cselect_b32 s{rX}, s{rX}, s{rO}")
            e(f"s_cselect_b32 s{rX+1}, s{rX+1}, s{rO+1}")
            e(f"s_mov_b32 s{rX+2}, 8192")
            e(f"s_cselect_b32 s{rX+2}, s{rX+2}, 4096")
            e(f"s_mov_b32 s{rX+3}, 0x20000")
            e(f"s_cmp_eq_u32 s{sT2}, 1")
            e(f"s_cselect_b32 s{sT}, 4096, 0")
            e(f"s_lshl_b32 s{sT2}, s{sT2}, 12")
            e(f"s_add_u32 m0, s{sT2}, {SH}")
            e("s_nop 0")
            for i in range(4):
                off = f" offset:{i*1024}" if i else ""
                e(f"buffer_load_dwordx4 v{vDma+i}, s[{rX}:{rX+3}], s{sT} offen{off} lds")
        cm("tree mask (8 bytes per lane)")
        e(f"s_lshr_b32 s{sT2}, s2, 3")
        e(f"s_lshl_b32 s{sT2}, s{sT2}, 7")
        e(f"s_add_u32 s{rM}, s{sM}, s{sT2}")
        e(f"s_addc_u32 s{rM+1}, s{sM+1}, 0")
        e(f"s_mov_b32 s{rM+2}, 128")
        e(f"s_mov_b32 s{rM+3}, 0x20000")
        e(f"buffer_load_dwordx2 v[{vMask}:{vMask+1}], v{vT+4}, s[{rM}:{rM+3}], 0 offen")
        cm("rest of the prefetch window")
        for j in range(1, PD):
            dma_seq(j)
        cm("output SRD")
        e(f"s_lshl_b32 s{sT3}, s2, 13")
        e(f"s_add_u32 s{rO}, s{sO}, s{sT3}")
        e(f"s_addc_u32 s{rO+1}, s{sO+1}, 0")
        e(f"s_mov_b32 s{rO+2}, 8192")
        e(f"s_mov_b32 s{rO+3}, 0x20000")
        cm("state init")
        for i in range(64):
            e(f"v_mov_b32 v{vO+i}, 0")
        e(f"v_mov_b32 v{vM}, 0xff800000")
        e(f"v_mov_b32 v{vL}, 0")
        wait0 = min(63, (PD - 1) * 8)
        e(f"s_waitcnt vmcnt({wait0})")
        e("s_barrier")
        if c.stamp:
            e(f"s_memrealtime s[{sTS+2}:{sTS+3}]")
        cm("Q fragments")
        for s in range(4):
            e(f"v_add_u32 v{vX+s}, {SH}, v{vKa+s}")
        for s in range(8):
            e(f"ds_read_b128 v[{vQ+4*s}:{vQ+4*s+3}], v{vX+(s&3)} offset:{(s>>2)*256}")

        def softmax_pv(nS, tree=False):
            if nS == 8:
                e(f"v_max3_f32 v{vT}, v{vS}, v{vS+1}, v{vS+2}")
                e(f"v_max3_f32 v{vT+1}, v{vS+3}, v{vS+4}, v{vS+5}")
                e(f"v_max3_f32 v{vT}, v{vT}, v{vS+6}, v{vS+7}")
                e(f"v_max_f32 v{vT}, v{vT}, v{vT+1}")
            else:
                e(f"v_max3_f32 v{vT}, v{vS}, v{vS+1}, v{vS+2}")
                e(f"v_max_f32 v{vT}, v{vT}, v{vS+3}")
            e(f"v_mov_b32 v{vT+1}, v{vT}")
            nop(2)
            e(f"v_permlane32_swap_b32 v{vT}, v{vT+1}")
            nop(1)
            e(f"v_max_f32 v{vT}, v{vT}, v{vT+1}")
            e(f"v_mov_b32 v{vT+1}, v{vT}")
            nop(2)
            e(f"v_permlane16_swap_b32 v{vT}, v{vT+1}")
            nop(1)
            e(f"v_max3_f32 v{vT}, v{vT}, v{vT+1}, v{vM}")
            e(f"v_mul_f32 v{vMc}, s{sC}, v{vT}")
            e(f"v_fma_f32 v{vAl}, v{vM}, s{sC}, -v{vMc}")
            e(f"v_mov_b32 v{vM}, v{vT}")
            for i in range(nS):
                e(f"v_fma_f32 v{vE+i}, v{vS+i}, s{sC}, -v{vMc}")
            e(f"v_exp_f32 v{vAl}, v{vAl}")
            for i in range(nS):
                e(f"v_exp_f32 v{vE+i}, v{vE+i}")
            nop(1)
            e(f"v_mul_f32 v{vL}, v{vL}, v{vAl}")
            for i in range(0, nS, 2):
                e(f"v_cvt_pk_bf16_f32 v{vP+i//2}, v{vE+i}, v{vE+i+1}")
            e(f"v_add_f32 v{vT}, v{vE}, v{vE+1}")
            e(f"v_add_f32 v{vT+1}, v{vE+2}, v{vE+3}")
            if nS == 8:
                e(f"v_add_f32 v{vT+2}, v{vE+4}, v{vE+5}")
                e(f"v_add_f32 v{vT+3}, v{vE+6}, v{vE+7}")
                e(f"v_add_f32 v{vT}, v{vT}, v{vT+2}")
                e(f"v_add_f32 v{vT+1}, v{vT+1}, v{vT+3}")
            e(f"v_add_f32 v{vT}, v{vT}, v{vT+1}")
            e(f"v_add_f32 v{vL}, v{vL}, v{vT}")
            for i in range(0, 64, 2):
                e(f"v_pk_mul_f32 v[{vO+i}:{vO+i+1}], v[{vO+i}:{vO+i+1}], v[{vAl}:{vAl+1}] op_sel_hi:[1,0]")

        def k_reads(off, dst):
            for s in range(8):
                o = off + (s >> 2) * 256
                e(f"ds_read_b128 v[{dst+4*s}:{dst+4*s+3}], v{vKa+(s&3)} offset:{o}")

        def qk_mfma(src, acc):
            for s in range(8):
                cin = "0" if s == 0 else f"v[{acc}:{acc+3}]"
                e(f"v_mfma_f32_16x16x32_bf16 v[{acc}:{acc+3}], v[{src+4*s}:{src+4*s+3}], v[{vQ+4*s}:{vQ+4*s+3}], {cin}")

        def v_reads(off, sub, addr=vVa):
            for t in range(16):
                o = off + (t >> 3) * 256
                d = vV + 4 * t + 2 * sub
                e(f"ds_read_b64_tr_b16 v[{d}:{d+1}], v{addr+(t&7)} offset:{o}")

        def pv_mfma(k32):
            for t in range(16):
                o = vO + 4 * t
                if k32:
                    e(f"v_mfma_f32_16x16x32_bf16 v[{o}:{o+3}], v[{vV+4*t}:{vV+4*t+3}], v[{vP}:{vP+3}], v[{o}:{o+3}]")
                else:
                    e(f"v_mfma_f32_16x16x16_bf16 v[{o}:{o+3}], v[{vV+4*t}:{vV+4*t+1}], v[{vP}:{vP+1}], v[{o}:{o+3}]")

        cm("tree tile: wave 0 only")
        e(f"s_cmp_lg_u32 s{sW}, 0")
        e("s_cbranch_scc1 L_notree")
        if not c.nocompute:
            for s in range(4):
                e(f"v_add_u32 v{vX+s}, {SH+8192}, v{vKa+s}")
            for s in range(8):
                e(f"ds_read_b128 v[{vV+4*s}:{vV+4*s+3}], v{vX+(s&3)} offset:{(s>>2)*256}")
            e("s_waitcnt lgkmcnt(0)")
            qk_mfma(vV, vS)
            for u in range(8):
                e(f"v_and_b32 v{vX+u}, 0xfff, v{vVa+u}")
            for u in range(8):
                e(f"v_add_u32 v{vX+u}, {SH+12288}, v{vX+u}")
            e(f"v_lshlrev_b32 v{vE}, 16, v{vMask}")
            e(f"v_and_b32 v{vE+1}, 0xffff0000, v{vMask}")
            e(f"v_lshlrev_b32 v{vE+2}, 16, v{vMask+1}")
            e(f"v_and_b32 v{vE+3}, 0xffff0000, v{vMask+1}")
            e(f"s_mov_b32 s{sT2}, {hex(f32bits(-1.6e10))}")
            for i in range(4):
                e(f"v_sub_f32 v{vE+i}, 1.0, v{vE+i}")
            v_reads(0, 0, addr=vX)
            e(f"v_cmp_gt_u32 vcc, 32, v{vLane}")
            e(f"v_mov_b32 v{vT+3}, 0xff800000")
            nop(4)
            for i in range(4):
                e(f"v_fma_f32 v{vS+i}, v{vE+i}, s{sT2}, v{vS+i}")
            for i in range(4):
                e(f"v_cndmask_b32 v{vS+i}, v{vT+3}, v{vS+i}, vcc")
            softmax_pv(4, tree=True)
            e("s_waitcnt lgkmcnt(0)")
            pv_mfma(False)
        lab("L_notree")
        cm("ring-relative addresses")
        for s in range(4):
            e(f"v_add_u32 v{vKa+s}, s{sRing}, v{vKa+s}")
        for u in range(8):
            e(f"v_add_u32 v{vVa+u}, s{sRing}, v{vVa+u}")
        e("s_waitcnt lgkmcnt(0)")

        def body(last):
            for j in range(NSLOT):
                p = j % SPT
                sub = p % NSUB
                after = min(PD - 1, NSLOT - 1 - j) if last else PD - 1
                e(f"s_waitcnt vmcnt({min(63, after*8)})")
                if not c.nocompute:
                    if p < NSUB:
                        k_reads(slot_lds(j), vV + 32 * sub)
                    else:
                        v_reads(slot_lds(j), sub)
                    e("s_waitcnt lgkmcnt(0)")
                if (not last) or j + PD < NSLOT:
                    dma_seq(j + PD)
                if not c.nocompute:
                    if p < NSUB:
                        qk_mfma(vV + 32 * sub, vS + 4 * sub)
                        if p == NSUB - 1:
                            nop(8)
                            softmax_pv(4 * NSUB)
                    elif p == SPT - 1:
                        pv_mfma(NSUB == 2)

        nbody = NT // R
        assert nbody * R == NT
        e(f"s_mov_b32 s{sCnt}, {nbody-1}")
        lab("L_loop")
        body(False)
        if c.prog:
            e(f"s_memrealtime s[{sTS+8}:{sTS+9}]")
            e("s_waitcnt lgkmcnt(0)")
            e(f"s_sub_u32 s{sT2}, {nbody-1}, s{sCnt}")
            e(f"s_mov_b32 m0, s{sT2}")
            e("s_nop 1")
            e(f"v_writelane_b32 v{vProg}, s{sTS+8}, m0")
        e(f"s_add_u32 s{sNext}, s{sNext}, {R*TSTEP}")
        e(f"s_sub_u32 s{sCnt}, s{sCnt}, 1")
        e(f"s_cmp_lg_u32 s{sCnt}, 0")
        e("s_cbranch_scc1 L_loop")
        body(True)
        if c.stamp:
            e(f"s_memrealtime s[{sTS+4}:{sTS+5}]")
        cm("merge the per-wave partials")
        e(f"v_mov_b32 v{vT+1}, v{vL}")
        nop(2)
        e(f"v_permlane32_swap_b32 v{vL}, v{vT+1}")
        nop(1)
        e(f"v_add_f32 v{vL}, v{vL}, v{vT+1}")
        e(f"v_mov_b32 v{vT+1}, v{vL}")
        nop(2)
        e(f"v_permlane16_swap_b32 v{vL}, v{vT+1}")
        nop(1)
        e(f"v_add_f32 v{vL}, v{vL}, v{vT+1}")
        e(f"v_and_b32 v{vT}, 15, v{vLane}")
        e(f"s_lshl_b32 s{sT2}, s{sW}, 7")
        e(f"s_add_u32 s{sT2}, s{sT2}, {STAT}")
        e(f"v_lshlrev_b32 v{vT+1}, 3, v{vT}")
        e(f"v_add_u32 v{vT+1}, s{sT2}, v{vT+1}")
        e(f"ds_write_b64 v{vT+1}, v[{vM}:{vM+1}]")
        e(f"v_lshrrev_b32 v{vT+1}, 4, v{vLane}")
        e(f"v_lshrrev_b32 v{vT+2}, 1, v{vT+1}")
        e(f"v_and_b32 v{vT+3}, 7, v{vT}")
        e(f"v_xor_b32 v{vT+2}, v{vT+2}, v{vT+3}")
        e(f"v_and_b32 v{vT+1}, 1, v{vT+1}")
        e(f"v_lshl_add_u32 v{vT+2}, v{vT+1}, 4, v{vT+2}")
        e(f"v_lshlrev_b32 v{vT+2}, 4, v{vT+2}")
        e(f"v_lshl_add_u32 v{vT+2}, v{vT}, 10, v{vT+2}")
        e(f"v_add_u32 v{vX}, s{sRing}, v{vT+2}")
        for j in range(1, 4):
            e(f"v_xor_b32 v{vX+j}, {j*32}, v{vX}")
        nop(4)
        for t in range(16):
            o_ = ((t >> 2) & 1) * 128 + (t >> 3) * 512
            e(f"ds_write_b128 v{vX+(t&3)}, v[{vO+4*t}:{vO+4*t+3}] offset:{o_}")
        e("s_waitcnt lgkmcnt(0)")
        e("s_barrier")
        RPW = 16 // NW
        LPR = 64 // RPW
        NP = 32 // LPR
        lg = int(math.log2(LPR))
        e(f"v_lshrrev_b32 v{vT}, {lg}, v{vLane}")
        e(f"s_mul_i32 s{sT2}, s{sW}, {RPW}")
        e(f"v_add_u32 v{vT}, s{sT2}, v{vT}")
        e(f"v_and_b32 v{vT+1}, {LPR-1}, v{vLane}")
        e(f"v_lshlrev_b32 v{vT+2}, 3, v{vT}")
        e(f"v_add_u32 v{vT+2}, {STAT}, v{vT+2}")
        vSt = vE
        vSt = vQ
        for w in range(NW):
            e(f"ds_read_b64 v[{vSt+2*w}:{vSt+2*w+1}], v{vT+2} offset:{w*128}")
        e(f"v_and_b32 v{vT+3}, 7, v{vT}")
        if LPR <= 16:
            e(f"v_xor_b32 v{vT+3}, v{vT+3}, v{vT+1}")
            e(f"v_lshlrev_b32 v{vT+3}, 4, v{vT+3}")
        else:
            e(f"v_and_b32 v{vT+4}, 15, v{vT+1}")
            e(f"v_xor_b32 v{vT+3}, v{vT+3}, v{vT+4}")
            e(f"v_lshlrev_b32 v{vT+3}, 4, v{vT+3}")
            e(f"v_lshrrev_b32 v{vT+4}, 4, v{vT+1}")
            e(f"v_lshl_add_u32 v{vT+3}, v{vT+4}, 9, v{vT+3}")
        e(f"v_lshl_add_u32 v{vX}, v{vT}, 10, v{vT+3}")
        pool = list(range(vV, vV + 64)) + list(range(vO, vO + 64))
        need = NW * NP * 8
        assert need <= 128
        addr_hi = {}
        for w in range(NW):
            base = w * RINGB
            blk = base // 65536
            if blk not in addr_hi:
                a = vX + 1 + blk
                e(f"v_add_u32 v{a}, {blk*65536}, v{vX}")
                addr_hi[blk] = a
        for w in range(NW):
            base = w * RINGB
            blk = base // 65536
            for j in range(NP):
                a0 = LPR * j
                pos = (a0 >> 4) * 32 * 16 + (a0 & 15) * 16
                for h in range(2):
                    d = pool[(w * NP + j) * 8 + 4 * h]
                    off = base - blk * 65536 + pos + h * 256
                    assert off < 65536
                    e(f"ds_read_b128 v[{d}:{d+3}], v{addr_hi[blk]} offset:{off}")
        e(f"v_lshlrev_b32 v{vT+5}, 4, v{vT+1}")
        e(f"v_lshl_add_u32 v{vT+5}, v{vT}, 9, v{vT+5}")
        e(f"s_waitcnt lgkmcnt({min(15, NW*NP*2)})")
        e(f"v_mov_b32 v{vT}, v{vSt}")
        for w in range(1, NW):
            e(f"v_max_f32 v{vT}, v{vT}, v{vSt+2*w}")
        e(f"v_mul_f32 v{vMc}, s{sC}, v{vT}")
        for w in range(NW):
            e(f"v_fma_f32 v{vSt+2*w}, v{vSt+2*w}, s{sC}, -v{vMc}")
        for w in range(NW):
            e(f"v_exp_f32 v{vSt+2*w}, v{vSt+2*w}")
        nop(1)
        e(f"v_mul_f32 v{vT}, v{vSt}, v{vSt+1}")
        for w in range(1, NW):
            e(f"v_fma_f32 v{vT}, v{vSt+2*w}, v{vSt+2*w+1}, v{vT}")
        e(f"v_rcp_f32 v{vT}, v{vT}")
        nop(1)
        for w in range(NW):
            e(f"v_mul_f32 v{vSt+2*w}, v{vSt+2*w}, v{vT}")
        e("s_waitcnt lgkmcnt(0)")
        for j in range(NP):
            for x in range(8):
                d0 = pool[j * 8 + x]
                e(f"v_mul_f32 v{d0}, v{d0}, v{vSt}")
            for w in range(1, NW):
                for x in range(8):
                    d0 = pool[j * 8 + x]
                    d = pool[(w * NP + j) * 8 + x]
                    e(f"v_fma_f32 v{d0}, v{d}, v{vSt+2*w}, v{d0}")
            for x in range(4):
                e(f"v_cvt_pk_bf16_f32 v{vS+4*(j&1)+x}, v{pool[j*8+2*x]}, v{pool[j*8+2*x+1]}")
            b = vS + 4 * (j & 1)
            off = f" offset:{j*LPR*16}" if j else ""
            e(f"buffer_store_dwordx4 v[{b}:{b+3}], v{vT+5}, s[{rO}:{rO+3}], 0 offen{off}")
            if NP > 2:
                nop(2)
        if c.stamp:
            e("s_waitcnt vmcnt(0)")
            e(f"s_memrealtime s[{sTS+6}:{sTS+7}]")
            e(f"s_getreg_b32 s{sT2}, hwreg(HW_REG_XCC_ID)")
            e(f"s_getreg_b32 s{sT3}, hwreg(HW_REG_HW_ID)")
            e("s_waitcnt lgkmcnt(0)")
            e(f"s_mov_b32 s{rD}, s{sWS}")
            e(f"s_mov_b32 s{rD+1}, s{sWS+1}")
            e(f"s_mov_b32 s{rD+2}, {256*NW*64}")
            e(f"s_mov_b32 s{rD+3}, 0x20000")
            e(f"s_mul_i32 s{sT}, s2, {NW*64}")
            e(f"s_lshl_b32 s{sCnt}, s{sW}, 6")
            e(f"s_add_u32 s{sT}, s{sT}, s{sCnt}")
            for i in range(8):
                e(f"v_mov_b32 v{vV+i}, s{sTS+i}")
            e(f"v_mov_b32 v{vV+8}, s{sT2}")
            e(f"v_mov_b32 v{vV+9}, s{sT3}")
            e(f"v_mov_b32 v{vV+10}, 0")
            e(f"v_mov_b32 v{vV+11}, 0")
            if c.prog:
                e(f"s_mov_b32 s{rD+2}, {(1<<20) + 256*NW*256}")
                e(f"s_mul_i32 s{sT3}, s2, {NW*256}")
                e(f"s_lshl_b32 s{sCnt}, s{sW}, 8")
                e(f"s_add_u32 s{sT3}, s{sT3}, s{sCnt}")
                e(f"s_add_u32 s{sT3}, s{sT3}, {1<<20}")
                e(f"v_lshlrev_b32 v{vT}, 2, v{vLane}")
                e(f"buffer_store_dword v{vProg}, v{vT}, s[{rD}:{rD+3}], s{sT3} offen")
                nop(2)
            e(f"v_mov_b32 v{vT}, 0")
            e(f"v_cmp_eq_u32 vcc, 0, v{vLane}")
            nop(2)
            e(f"s_and_saveexec_b64 s[{sTS}:{sTS+1}], vcc")
            e(f"buffer_store_dwordx4 v[{vV}:{vV+3}], v{vT}, s[{rD}:{rD+3}], s{sT} offen")
            e(f"buffer_store_dwordx4 v[{vV+4}:{vV+7}], v{vT}, s[{rD}:{rD+3}], s{sT} offen offset:16")
            e(f"buffer_store_dwordx4 v[{vV+8}:{vV+11}], v{vT}, s[{rD}:{rD+3}], s{sT} offen offset:32")
        lab("L_done")
        e("s_endpgm")

        body = "\n".join(self.L)
        out = HEADER
        out += f"; @launch grid=(256,1,1) block=({NW*64},1,1) lds={LDS}\n"
        out += f""".amdgcn_target "amdgcn-amd-amdhsa--gfx950"
.text
.globl {c.kname}
.p2align 8
.type {c.kname},@function
{body}
.section .rodata,"a"
.p2align 6
.amdhsa_kernel {c.kname}
  .amdhsa_next_free_vgpr {c.vnext}
  .amdhsa_next_free_sgpr 102
  .amdhsa_accum_offset {c.vnext}
  .amdhsa_group_segment_fixed_size 0
  .amdhsa_kernarg_size 72
  .amdhsa_user_sgpr_count 2
  .amdhsa_user_sgpr_kernarg_segment_ptr 1
  .amdhsa_system_sgpr_workgroup_id_x 1
.end_amdhsa_kernel
"""
        return out


def f32bits(x):
    import struct
    return struct.unpack("<I", struct.pack("<f", x))[0]


def parse(args):
    kw = {}
    for a in args:
        k, v = a.split("=", 1)
        if k in ("nw", "nsub", "ring", "rot", "vnext", "pd", "xmask"):
            v = int(v)
        elif k in ("nocompute", "stamp", "prog"):
            v = bool(int(v))
        else:
            v = v.replace("+", " ")
        kw[k] = v
    return Cfg(**kw)


if __name__ == "__main__":
    out = sys.argv[1]
    cfg = parse(sys.argv[2:])
    open(out, "w").write(Gen(cfg).gen())
```

```python
import sys
import math

KNAME = "standalone__tree_speculative_verify_tree_attention_over_candidate_token_tree__sampling_kernel"

HEADER = """; Kernarg layout for this problem (72 bytes, ptrs only, base s[0:1]):
"""


class Cfg:
    def __init__(self, **kw):
        self.nw = 4
        self.nsub = 2
        self.ring = 1
        self.kpol = ""
        self.vpol = ""
        self.order = "inter"
        self.rot = 0
        self.kname = KNAME
        self.nocompute = False
        self.stamp = False
        self.vnext = 256
        self.xmask = 0
        self.prog = False
        self.pd = 0
        self.swap = 0
        self.pd2 = 0
        self.xm2 = 0
        self.late = 0
        self.late2 = 0
        self.dyn = False
        self.ctl = False
        self.theta = 32
        self.lateb = 0
        self.nshard = 4
        for k, v in kw.items():
            assert hasattr(self, k), k
            setattr(self, k, v)


class Gen:
    def __init__(self, cfg):
        self.c = cfg
        self.L = []

    def e(self, s):
        self.L.append("    " + s)

    def lab(self, s):
        self.L.append(s + ":")

    def cm(self, s):
        self.L.append("    ; " + s)

    def nop(self, n):
        while n > 0:
            k = min(n, 16)
            self.e(f"s_nop {k-1}")
            n -= k

    def gen(self):
        c = self.c
        NW, NSUB, R = c.nw, c.nsub, c.ring
        SLOT = 8192
        TILE = SLOT * NSUB
        NTILE = (1 << 20) // TILE
        NT = NTILE // NW
        RINGB = R * 2 * TILE
        assert RINGB >= 16384
        SH = NW * RINGB
        STAT = SH + 16384
        CTR = STAT + NW * 128
        LDS = CTR + (16 if (c.dyn or c.ctl) else 0)
        assert LDS <= 163840, LDS
        NSLOT = R * 2 * NSUB
        self.LDS = LDS
        GPW = max(1, 4 // NW)

        sKA = 4
        sQ, sK, sV, sKT, sVT, sM, sO = 4, 6, 8, 10, 12, 14, 16
        sDBG = 18
        rK, rV, rX, rO = 20, 24, 28, 32
        sW = 36
        sRing = 37
        sNext = 38
        sT = 39
        sCnt = 40
        sC = 41
        sT2, sT3 = 42, 43
        rM = 44
        sSeg = 50
        sWS = 48
        rD = 52
        sTS = 56

        vLane = 1
        vT = 2
        vDma = 10
        vKa = 14
        vVa = 18
        vM, vL = 26, 27
        vMask = 28
        vAl = 30
        vMc = 31
        vS = 32
        vP = 40
        vE = 44
        vQ = 52
        vV = 84
        vO = 148
        vProg = 230
        vX = 212
        vCtrA, vCtrV, vClaim = 231, 232, 233
        vG, vOne, vZero, vFlagR, vFlagW, vFlag = 234, 235, 236, 237, 238, 239
        rG = 72
        sX64, sMode = 76, 77

        e, lab, cm, nop = self.e, self.lab, self.cm, self.nop
        kp = (" " + c.kpol) if c.kpol else ""
        vp = (" " + c.vpol) if c.vpol else ""

        PD = c.pd if c.pd else NSLOT
        assert 1 <= PD <= NSLOT
        SPT = 2 * NSUB
        SEG = (1 << 20) // NW
        TSTEP = NW * TILE if c.order in ("inter", "inter2") else TILE
        SUBSTEP = NW * SLOT if c.order == "inter2" else SLOT

        def dma_seq(j, dynbase=False):
            tl, p = divmod(j, SPT)
            if dynbase:
                tl = 0
            sub = p % NSUB
            srd, pol = (rK, kp) if p < NSUB else (rV, vp)
            lds = (j % NSLOT) * SLOT
            for h in range(2):
                g = tl * TSTEP + sub * SUBSTEP + h * 4096
                e(f"s_add_u32 s{sT}, s{sNext}, {g}")
                if c.rot:
                    if c.order == "inter":
                        e(f"s_and_b32 s{sT}, s{sT}, {(1<<20)-1}")
                    else:
                        e(f"s_and_b32 s{sT}, s{sT}, {SEG-1}")
                        e(f"s_add_u32 s{sT}, s{sT}, s{sSeg}")
                e(f"s_add_u32 m0, s{sRing}, {lds + h*4096}")
                e("s_nop 0")
                for i in range(4):
                    off = f" offset:{i*1024}" if i else ""
                    e(f"buffer_load_dwordx4 v{vDma+i}, s[{srd}:{srd+3}], s{sT} offen{off}{pol} lds")

        def slot_lds(j):
            return (j % NSLOT) * SLOT

        lab(c.kname)
        e(f"s_cmp_ge_u32 s2, 256")
        e(f"s_cbranch_scc1 L_done")
        if c.xmask:
            e(f"s_getreg_b32 s3, hwreg(HW_REG_XCC_ID, 0, 4)")
            e(f"s_lshr_b32 s3, {c.xmask}, s3")
            e(f"s_and_b32 s3, s3, 1")
            e(f"s_cmp_eq_u32 s3, 0")
            e(f"s_cbranch_scc1 L_done")
        if c.swap:
            e(f"s_xor_b32 s2, s2, {c.swap}")
        e(f"s_load_dwordx16 s[4:19], s[0:1], 0")
        if c.stamp:
            e(f"s_load_dwordx2 s[{sWS}:{sWS+1}], s[0:1], 64")
            e(f"s_memrealtime s[{sTS}:{sTS+1}]")
        cm("lane-dependent addresses")
        e(f"v_and_b32 v{vLane}, 63, v0")
        e(f"v_lshrrev_b32 v{vT}, 6, v0")
        e(f"v_lshrrev_b32 v{vT+1}, 5, v{vLane}")
        e(f"v_readfirstlane_b32 s{sW}, v{vT}")
        e(f"v_and_b32 v{vT+2}, 31, v{vLane}")
        e(f"v_lshlrev_b32 v{vT+3}, 1, v{vT+1}")
        e(f"v_xor_b32 v{vT+2}, v{vT+2}, v{vT+3}")
        e(f"v_lshlrev_b32 v{vT+2}, 4, v{vT+2}")
        e(f"v_lshl_add_u32 v{vDma}, v{vT+1}, 9, v{vT+2}")
        for i in range(1, 4):
            e(f"v_xor_b32 v{vDma+i}, {i*64}, v{vDma}")
        e(f"v_and_b32 v{vT}, 15, v{vLane}")
        e(f"v_lshrrev_b32 v{vT+1}, 4, v{vLane}")
        e(f"v_and_b32 v{vT+2}, 7, v{vT}")
        e(f"v_lshlrev_b32 v{vT+2}, 5, v{vT+2}")
        e(f"v_lshlrev_b32 v{vT+3}, 4, v{vT+1}")
        e(f"v_xor_b32 v{vT+2}, v{vT+2}, v{vT+3}")
        e(f"v_lshl_add_u32 v{vKa}, v{vT}, 9, v{vT+2}")
        for s in range(1, 4):
            e(f"v_xor_b32 v{vKa+s}, {s*64}, v{vKa}")
        e(f"v_lshrrev_b32 v{vT}, 2, v{vLane}")
        e(f"v_and_b32 v{vT+1}, 7, v{vT}")
        e(f"v_lshlrev_b32 v{vT+1}, 5, v{vT+1}")
        e(f"v_and_b32 v{vT+2}, 3, v{vLane}")
        e(f"v_lshlrev_b32 v{vT+2}, 3, v{vT+2}")
        e(f"v_or_b32 v{vT+1}, v{vT+1}, v{vT+2}")
        e(f"v_lshl_add_u32 v{vVa}, v{vT}, 9, v{vT+1}")
        for u in range(1, 8):
            e(f"v_xor_b32 v{vVa+u}, {u*32}, v{vVa}")
        e(f"v_and_b32 v{vT}, 7, v{vLane}")
        e(f"v_lshlrev_b32 v{vT}, 4, v{vT}")
        e(f"v_bfe_u32 v{vT+1}, v{vLane}, 4, 1")
        e(f"v_lshl_add_u32 v{vT+4}, v{vT+1}, 3, v{vT}")
        e(f"s_mul_i32 s{sRing}, s{sW}, {RINGB}")
        if c.order == "inter2":
            e(f"s_mul_i32 s{sNext}, s{sW}, {SLOT}")
        elif c.order == "inter":
            e(f"s_mul_i32 s{sNext}, s{sW}, {TILE}")
            if c.rot:
                e(f"s_mul_i32 s{sT2}, s2, {c.rot*TILE}")
                e(f"s_add_u32 s{sNext}, s{sNext}, s{sT2}")
        else:
            if c.rot:
                e(f"s_mul_i32 s{sSeg}, s{sW}, {SEG}")
                e(f"s_mul_i32 s{sNext}, s2, {c.rot*TILE}")
            else:
                e(f"s_mul_i32 s{sNext}, s{sW}, {SEG}")
        e(f"s_mov_b32 s{sC}, {hex(f32bits(0.0625*math.log2(math.e)))}")
        e(f"s_lshl_b32 s{sT2}, s2, 20")
        e(f"s_lshr_b32 s{sT3}, s2, 12")
        e("s_waitcnt lgkmcnt(0)")
        cm("SRDs")
        e(f"s_add_u32 s{rK}, s{sK}, s{sT2}")
        e(f"s_addc_u32 s{rK+1}, s{sK+1}, s{sT3}")
        e(f"s_mov_b32 s{rK+2}, {1<<20}")
        e(f"s_mov_b32 s{rK+3}, 0x20000")
        e(f"s_add_u32 s{rV}, s{sV}, s{sT2}")
        e(f"s_addc_u32 s{rV+1}, s{sV+1}, s{sT3}")
        e(f"s_mov_b32 s{rV+2}, {1<<20}")
        e(f"s_mov_b32 s{rV+3}, 0x20000")
        cm("first K slot")
        dma_seq(0)
        cm("shared region: group 0,1 = Q rows 0-7, 8-15; 2 = tree K; 3 = tree V")
        for gi in range(GPW):
            if GPW == 1:
                e(f"s_and_b32 s{sT2}, s{sW}, 3")
            else:
                e(f"s_mul_i32 s{sT2}, s{sW}, {GPW}")
                e(f"s_add_u32 s{sT2}, s{sT2}, {gi}")
            e(f"s_lshl_b32 s{sT3}, s2, 13")
            e(f"s_add_u32 s{rX}, s{sQ}, s{sT3}")
            e(f"s_addc_u32 s{rX+1}, s{sQ+1}, 0")
            e(f"s_lshl_b32 s{sT3}, s2, 12")
            e(f"s_cmp_eq_u32 s{sT2}, 2")
            e(f"s_cselect_b32 s{rO}, s{sKT}, s{sVT}")
            e(f"s_cselect_b32 s{rO+1}, s{sKT+1}, s{sVT+1}")
            e(f"s_add_u32 s{rO}, s{rO}, s{sT3}")
            e(f"s_addc_u32 s{rO+1}, s{rO+1}, 0")
            e(f"s_cmp_lt_u32 s{sT2}, 2")
            e(f"s_cselect_b32 s{rX}, s{rX}, s{rO}")
            e(f"s_cselect_b32 s{rX+1}, s{rX+1}, s{rO+1}")
            e(f"s_mov_b32 s{rX+2}, 8192")
            e(f"s_cselect_b32 s{rX+2}, s{rX+2}, 4096")
            e(f"s_mov_b32 s{rX+3}, 0x20000")
            e(f"s_cmp_eq_u32 s{sT2}, 1")
            e(f"s_cselect_b32 s{sT}, 4096, 0")
            e(f"s_lshl_b32 s{sT2}, s{sT2}, 12")
            e(f"s_add_u32 m0, s{sT2}, {SH}")
            e("s_nop 0")
            for i in range(4):
                off = f" offset:{i*1024}" if i else ""
                e(f"buffer_load_dwordx4 v{vDma+i}, s[{rX}:{rX+3}], s{sT} offen{off} lds")
        cm("tree mask (8 bytes per lane)")
        e(f"s_lshr_b32 s{sT2}, s2, 3")
        e(f"s_lshl_b32 s{sT2}, s{sT2}, 7")
        e(f"s_add_u32 s{rM}, s{sM}, s{sT2}")
        e(f"s_addc_u32 s{rM+1}, s{sM+1}, 0")
        e(f"s_mov_b32 s{rM+2}, 128")
        e(f"s_mov_b32 s{rM+3}, 0x20000")
        e(f"buffer_load_dwordx2 v[{vMask}:{vMask+1}], v{vT+4}, s[{rM}:{rM+3}], 0 offen")
        def stream(PD, sfx, late=0):
            cm("rest of the prefetch window")
            for j in range(1, PD):
                dma_seq(j)
            cm("output SRD")
            e(f"s_lshl_b32 s{sT3}, s2, 13")
            e(f"s_add_u32 s{rO}, s{sO}, s{sT3}")
            e(f"s_addc_u32 s{rO+1}, s{sO+1}, 0")
            e(f"s_mov_b32 s{rO+2}, 8192")
            e(f"s_mov_b32 s{rO+3}, 0x20000")
            cm("state init")
            for i in range(64):
                e(f"v_mov_b32 v{vO+i}, 0")
            e(f"v_mov_b32 v{vM}, 0xff800000")
            e(f"v_mov_b32 v{vL}, 0")
            if c.ctl:
                sh_per = 256 // c.nshard
                e(f"s_lshr_b32 s{sT2}, s2, 3")
                e(f"s_and_b32 s{sT2}, s{sT2}, {c.nshard-1}")
                e(f"s_lshl_b32 s{sT2}, s{sT2}, {6 if c.nshard <= 4 else 5}")
                e(f"s_add_u32 s{rG}, s{sDBG}, s{sT2}")
                e(f"s_addc_u32 s{rG+1}, s{sDBG+1}, 0")
                e(f"s_cmp_eq_u32 s{sW}, 0")
                e(f"s_cselect_b32 s{rG+2}, 4, 0")
                e(f"s_mov_b32 s{rG+3}, 0x20000")
                e(f"s_cselect_b32 s{sT2}, 0, 4")
                e(f"s_add_u32 s{sT2}, s{sT2}, {CTR}")
                e(f"v_mov_b32 v{vFlagW}, s{sT2}")
                e(f"v_mov_b32 v{vFlagR}, {CTR}")
                e(f"v_mov_b32 v{vG}, 0")
                e(f"v_mov_b32 v{vOne}, 1")
                e(f"v_mov_b32 v{vZero}, 0")
                e(f"ds_write_b32 v{vFlagR}, v{vOne}")
                e(f"s_mov_b32 s{sX64}, 0")
            if c.dyn:
                e(f"v_mov_b32 v{vCtrA}, {CTR}")
                e(f"v_mov_b32 v{vCtrV}, {NW}")
                e(f"ds_write_b32 v{vCtrA}, v{vCtrV}")
                e(f"v_mov_b32 v{vCtrV}, 1")
            wait0 = min(63, (PD - 1) * 8)
            e(f"s_waitcnt vmcnt({wait0}) lgkmcnt(0)" if (c.dyn or c.ctl) else f"s_waitcnt vmcnt({wait0})")
            e("s_barrier")
            if c.stamp:
                e(f"s_memrealtime s[{sTS+2}:{sTS+3}]")
            cm("Q fragments")
            for s in range(4):
                e(f"v_add_u32 v{vX+s}, {SH}, v{vKa+s}")
            for s in range(8):
                e(f"ds_read_b128 v[{vQ+4*s}:{vQ+4*s+3}], v{vX+(s&3)} offset:{(s>>2)*256}")

            def softmax_pv(nS, tree=False):
                if nS == 8:
                    e(f"v_max3_f32 v{vT}, v{vS}, v{vS+1}, v{vS+2}")
                    e(f"v_max3_f32 v{vT+1}, v{vS+3}, v{vS+4}, v{vS+5}")
                    e(f"v_max3_f32 v{vT}, v{vT}, v{vS+6}, v{vS+7}")
                    e(f"v_max_f32 v{vT}, v{vT}, v{vT+1}")
                else:
                    e(f"v_max3_f32 v{vT}, v{vS}, v{vS+1}, v{vS+2}")
                    e(f"v_max_f32 v{vT}, v{vT}, v{vS+3}")
                e(f"v_mov_b32 v{vT+1}, v{vT}")
                nop(2)
                e(f"v_permlane32_swap_b32 v{vT}, v{vT+1}")
                nop(1)
                e(f"v_max_f32 v{vT}, v{vT}, v{vT+1}")
                e(f"v_mov_b32 v{vT+1}, v{vT}")
                nop(2)
                e(f"v_permlane16_swap_b32 v{vT}, v{vT+1}")
                nop(1)
                e(f"v_max3_f32 v{vT}, v{vT}, v{vT+1}, v{vM}")
                e(f"v_mul_f32 v{vMc}, s{sC}, v{vT}")
                e(f"v_fma_f32 v{vAl}, v{vM}, s{sC}, -v{vMc}")
                e(f"v_mov_b32 v{vM}, v{vT}")
                for i in range(nS):
                    e(f"v_fma_f32 v{vE+i}, v{vS+i}, s{sC}, -v{vMc}")
                e(f"v_exp_f32 v{vAl}, v{vAl}")
                for i in range(nS):
                    e(f"v_exp_f32 v{vE+i}, v{vE+i}")
                nop(1)
                e(f"v_mul_f32 v{vL}, v{vL}, v{vAl}")
                for i in range(0, nS, 2):
                    e(f"v_cvt_pk_bf16_f32 v{vP+i//2}, v{vE+i}, v{vE+i+1}")
                e(f"v_add_f32 v{vT}, v{vE}, v{vE+1}")
                e(f"v_add_f32 v{vT+1}, v{vE+2}, v{vE+3}")
                if nS == 8:
                    e(f"v_add_f32 v{vT+2}, v{vE+4}, v{vE+5}")
                    e(f"v_add_f32 v{vT+3}, v{vE+6}, v{vE+7}")
                    e(f"v_add_f32 v{vT}, v{vT}, v{vT+2}")
                    e(f"v_add_f32 v{vT+1}, v{vT+1}, v{vT+3}")
                e(f"v_add_f32 v{vT}, v{vT}, v{vT+1}")
                e(f"v_add_f32 v{vL}, v{vL}, v{vT}")
                for i in range(0, 64, 2):
                    e(f"v_pk_mul_f32 v[{vO+i}:{vO+i+1}], v[{vO+i}:{vO+i+1}], v[{vAl}:{vAl+1}] op_sel_hi:[1,0]")

            def k_reads(off, dst):
                for s in range(8):
                    o = off + (s >> 2) * 256
                    e(f"ds_read_b128 v[{dst+4*s}:{dst+4*s+3}], v{vKa+(s&3)} offset:{o}")

            def qk_mfma(src, acc):
                for s in range(8):
                    cin = "0" if s == 0 else f"v[{acc}:{acc+3}]"
                    e(f"v_mfma_f32_16x16x32_bf16 v[{acc}:{acc+3}], v[{src+4*s}:{src+4*s+3}], v[{vQ+4*s}:{vQ+4*s+3}], {cin}")

            def v_reads(off, sub, addr=vVa):
                for t in range(16):
                    o = off + (t >> 3) * 256
                    d = vV + 4 * t + 2 * sub
                    e(f"ds_read_b64_tr_b16 v[{d}:{d+1}], v{addr+(t&7)} offset:{o}")

            def pv_mfma(k32):
                for t in range(16):
                    o = vO + 4 * t
                    if k32:
                        e(f"v_mfma_f32_16x16x32_bf16 v[{o}:{o+3}], v[{vV+4*t}:{vV+4*t+3}], v[{vP}:{vP+3}], v[{o}:{o+3}]")
                    else:
                        e(f"v_mfma_f32_16x16x16_bf16 v[{o}:{o+3}], v[{vV+4*t}:{vV+4*t+1}], v[{vP}:{vP+1}], v[{o}:{o+3}]")

            cm("tree tile: wave 0 only")
            e(f"s_cmp_lg_u32 s{sW}, 0")
            e(f"s_cbranch_scc1 L_notree{sfx}")
            if not c.nocompute:
                for s in range(4):
                    e(f"v_add_u32 v{vX+s}, {SH+8192}, v{vKa+s}")
                for s in range(8):
                    e(f"ds_read_b128 v[{vV+4*s}:{vV+4*s+3}], v{vX+(s&3)} offset:{(s>>2)*256}")
                e("s_waitcnt lgkmcnt(0)")
                qk_mfma(vV, vS)
                for u in range(8):
                    e(f"v_and_b32 v{vX+u}, 0xfff, v{vVa+u}")
                for u in range(8):
                    e(f"v_add_u32 v{vX+u}, {SH+12288}, v{vX+u}")
                e(f"v_lshlrev_b32 v{vE}, 16, v{vMask}")
                e(f"v_and_b32 v{vE+1}, 0xffff0000, v{vMask}")
                e(f"v_lshlrev_b32 v{vE+2}, 16, v{vMask+1}")
                e(f"v_and_b32 v{vE+3}, 0xffff0000, v{vMask+1}")
                e(f"s_mov_b32 s{sT2}, {hex(f32bits(-1.6e10))}")
                for i in range(4):
                    e(f"v_sub_f32 v{vE+i}, 1.0, v{vE+i}")
                v_reads(0, 0, addr=vX)
                e(f"v_cmp_gt_u32 vcc, 32, v{vLane}")
                e(f"v_mov_b32 v{vT+3}, 0xff800000")
                nop(4)
                for i in range(4):
                    e(f"v_fma_f32 v{vS+i}, v{vE+i}, s{sT2}, v{vS+i}")
                for i in range(4):
                    e(f"v_cndmask_b32 v{vS+i}, v{vT+3}, v{vS+i}, vcc")
                softmax_pv(4, tree=True)
                e("s_waitcnt lgkmcnt(0)")
                pv_mfma(False)
            lab(f"L_notree{sfx}")
            cm("ring-relative addresses")
            for s in range(4):
                e(f"v_add_u32 v{vKa+s}, s{sRing}, v{vKa+s}")
            for u in range(8):
                e(f"v_add_u32 v{vVa+u}, s{sRing}, v{vVa+u}")
            e("s_waitcnt lgkmcnt(0)")

            def body(last):
                for j in range(NSLOT):
                    p = j % SPT
                    sub = p % NSUB
                    after = min(PD - 1, NSLOT - 1 - j) if last else PD - 1
                    e(f"s_waitcnt vmcnt({min(63, after*8)})")
                    if not c.nocompute:
                        if p < NSUB:
                            k_reads(slot_lds(j), vV + 32 * sub)
                        else:
                            v_reads(slot_lds(j), sub)
                        e("s_waitcnt lgkmcnt(0)")
                    issue = (not last) or j + PD < NSLOT
                    if issue and not (late >> p) & 1:
                        dma_seq(j + PD)
                    if not c.nocompute:
                        if p < NSUB:
                            qk_mfma(vV + 32 * sub, vS + 4 * sub)
                            if p == NSUB - 1:
                                nop(8)
                                softmax_pv(4 * NSUB)
                        elif p == SPT - 1:
                            pv_mfma(NSUB == 2)
                    if issue and (late >> p) & 1:
                        dma_seq(j + PD)

            if c.dyn:
                assert R == 1 and PD == NSLOT and not c.rot and c.order == "inter"

                def compute(p):
                    sub = p % NSUB
                    if p < NSUB:
                        qk_mfma(vV + 32 * sub, vS + 4 * sub)
                        if p == NSUB - 1:
                            nop(8)
                            softmax_pv(4 * NSUB)
                    elif p == SPT - 1:
                        pv_mfma(NSUB == 2)

                def reads(p):
                    sub = p % NSUB
                    if p < NSUB:
                        k_reads(slot_lds(p), vV + 32 * sub)
                    else:
                        v_reads(slot_lds(p), sub)
                    e("s_waitcnt lgkmcnt(0)")

                if c.prog:
                    e(f"s_mov_b32 s{sCnt}, 0")
                lab(f"L_loop{sfx}")
                e("s_mov_b64 exec, 1")
                e(f"ds_add_rtn_u32 v{vClaim}, v{vCtrA}, v{vCtrV}")
                e("s_mov_b64 exec, -1")
                for p in range(SPT):
                    e(f"s_waitcnt vmcnt({(SPT-1)*8})")
                    reads(p)
                    if p == 0:
                        e(f"v_readfirstlane_b32 s{sNext}, v{vClaim}")
                        e(f"s_cmp_ge_u32 s{sNext}, {NTILE}")
                        e(f"s_cbranch_scc1 L_last{sfx}")
                        e(f"s_mul_i32 s{sNext}, s{sNext}, {TILE}")
                    dma_seq(p, dynbase=True)
                    compute(p)
                if c.prog:
                    e(f"s_memrealtime s[{sTS+8}:{sTS+9}]")
                    e("s_waitcnt lgkmcnt(0)")
                    e(f"s_mov_b32 m0, s{sCnt}")
                    e(f"s_add_u32 s{sCnt}, s{sCnt}, 1")
                    e(f"v_writelane_b32 v{vProg}, s{sTS+8}, m0")
                e(f"s_branch L_loop{sfx}")
                lab(f"L_last{sfx}")
                for p in range(SPT):
                    if p > 0:
                        e(f"s_waitcnt vmcnt({(SPT-1-p)*8})")
                        reads(p)
                    compute(p)
                return
            self.uid = getattr(self, "uid", 0)

            def body_ctl(last):
                assert PD == 1 and R == 1
                for j in range(NSLOT):
                    p = j % SPT
                    sub = p % NSUB
                    e(f"s_waitcnt vmcnt({1 if j == 0 else 0})")
                    if p < NSUB:
                        k_reads(slot_lds(j), vV + 32 * sub)
                    else:
                        v_reads(slot_lds(j), sub)
                    e(f"ds_read_b32 v{vFlag}, v{vFlagR}")
                    if j == 1:
                        e(f"v_readfirstlane_b32 s{sT2}, v{vG}")
                        e(f"s_sub_u32 s{sT2}, s{sX64}, s{sT2}")
                        e(f"s_cmp_lt_i32 s{sT2}, {c.theta}")
                        e(f"s_cselect_b32 s{sT2}, 1, 0")
                        e(f"v_mov_b32 v{vT}, s{sT2}")
                        e(f"ds_write_b32 v{vFlagW}, v{vT}")
                    e("s_waitcnt lgkmcnt(0)")
                    issue = (not last) or j + PD < NSLOT
                    la, lb = (late >> p) & 1, (c.lateb >> p) & 1
                    self.uid += 1
                    u = self.uid
                    if issue and la != lb:
                        e(f"v_readfirstlane_b32 s{sMode}, v{vFlag}")
                        e(f"s_cmp_eq_u32 s{sMode}, {0 if la else 1}")
                        e(f"s_cbranch_scc1 L_e{u}")
                        dma_seq(j + PD)
                        lab(f"L_e{u}")
                    elif issue and not la:
                        dma_seq(j + PD)
                    if p < NSUB:
                        qk_mfma(vV + 32 * sub, vS + 4 * sub)
                        if p == NSUB - 1:
                            nop(8)
                            softmax_pv(4 * NSUB)
                    elif p == SPT - 1:
                        pv_mfma(NSUB == 2)
                    if issue and la != lb:
                        e(f"s_cmp_lg_u32 s{sMode}, {0 if la else 1}")
                        e(f"s_cbranch_scc1 L_l{u}")
                        dma_seq(j + PD)
                        lab(f"L_l{u}")
                    elif issue and la:
                        dma_seq(j + PD)
                if not last:
                    e("s_mov_b64 exec, 1")
                    e(f"v_mov_b32 v{vG}, 1")
                    e(f"buffer_atomic_add v{vG}, v{vZero}, s[{rG}:{rG+3}], 0 offen sc0")
                    e("s_mov_b64 exec, -1")
                    e(f"s_add_u32 s{sX64}, s{sX64}, {256 // c.nshard}")

            if c.ctl:
                body = body_ctl
            nbody = NT // R
            assert nbody * R == NT
            e(f"s_mov_b32 s{sCnt}, {nbody-1}")
            lab(f"L_loop{sfx}")
            body(False)
            if c.prog:
                e(f"s_memrealtime s[{sTS+8}:{sTS+9}]")
                e("s_waitcnt lgkmcnt(0)")
                e(f"s_sub_u32 s{sT2}, {nbody-1}, s{sCnt}")
                e(f"s_mov_b32 m0, s{sT2}")
                e("s_nop 1")
                e(f"v_writelane_b32 v{vProg}, s{sTS+8}, m0")
            e(f"s_add_u32 s{sNext}, s{sNext}, {R*TSTEP}")
            e(f"s_sub_u32 s{sCnt}, s{sCnt}, 1")
            e(f"s_cmp_lg_u32 s{sCnt}, 0")
            e(f"s_cbranch_scc1 L_loop{sfx}")
            body(True)

        if c.pd2:
            e(f"s_getreg_b32 s{sT2}, hwreg(HW_REG_XCC_ID, 0, 4)")
            e(f"s_lshr_b32 s{sT2}, {c.xm2}, s{sT2}")
            e(f"s_and_b32 s{sT2}, s{sT2}, 1")
            e(f"s_cmp_eq_u32 s{sT2}, 1")
            e("s_cbranch_scc1 L_alt")
            stream(PD, "", c.late)
            e("s_branch L_merge")
            lab("L_alt")
            stream(c.pd2, "_b", c.late2)
            lab("L_merge")
        else:
            stream(PD, "", c.late)
        if c.stamp:
            e(f"s_memrealtime s[{sTS+4}:{sTS+5}]")
        cm("merge the per-wave partials")
        e(f"v_mov_b32 v{vT+1}, v{vL}")
        nop(2)
        e(f"v_permlane32_swap_b32 v{vL}, v{vT+1}")
        nop(1)
        e(f"v_add_f32 v{vL}, v{vL}, v{vT+1}")
        e(f"v_mov_b32 v{vT+1}, v{vL}")
        nop(2)
        e(f"v_permlane16_swap_b32 v{vL}, v{vT+1}")
        nop(1)
        e(f"v_add_f32 v{vL}, v{vL}, v{vT+1}")
        e(f"v_and_b32 v{vT}, 15, v{vLane}")
        e(f"s_lshl_b32 s{sT2}, s{sW}, 7")
        e(f"s_add_u32 s{sT2}, s{sT2}, {STAT}")
        e(f"v_lshlrev_b32 v{vT+1}, 3, v{vT}")
        e(f"v_add_u32 v{vT+1}, s{sT2}, v{vT+1}")
        e(f"ds_write_b64 v{vT+1}, v[{vM}:{vM+1}]")
        e(f"v_lshrrev_b32 v{vT+1}, 4, v{vLane}")
        e(f"v_lshrrev_b32 v{vT+2}, 1, v{vT+1}")
        e(f"v_and_b32 v{vT+3}, 7, v{vT}")
        e(f"v_xor_b32 v{vT+2}, v{vT+2}, v{vT+3}")
        e(f"v_and_b32 v{vT+1}, 1, v{vT+1}")
        e(f"v_lshl_add_u32 v{vT+2}, v{vT+1}, 4, v{vT+2}")
        e(f"v_lshlrev_b32 v{vT+2}, 4, v{vT+2}")
        e(f"v_lshl_add_u32 v{vT+2}, v{vT}, 10, v{vT+2}")
        e(f"v_add_u32 v{vX}, s{sRing}, v{vT+2}")
        for j in range(1, 4):
            e(f"v_xor_b32 v{vX+j}, {j*32}, v{vX}")
        nop(4)
        for t in range(16):
            o_ = ((t >> 2) & 1) * 128 + (t >> 3) * 512
            e(f"ds_write_b128 v{vX+(t&3)}, v[{vO+4*t}:{vO+4*t+3}] offset:{o_}")
        e("s_waitcnt lgkmcnt(0)")
        e("s_barrier")
        RPW = 16 // NW
        LPR = 64 // RPW
        NP = 32 // LPR
        lg = int(math.log2(LPR))
        e(f"v_lshrrev_b32 v{vT}, {lg}, v{vLane}")
        e(f"s_mul_i32 s{sT2}, s{sW}, {RPW}")
        e(f"v_add_u32 v{vT}, s{sT2}, v{vT}")
        e(f"v_and_b32 v{vT+1}, {LPR-1}, v{vLane}")
        e(f"v_lshlrev_b32 v{vT+2}, 3, v{vT}")
        e(f"v_add_u32 v{vT+2}, {STAT}, v{vT+2}")
        vSt = vE
        vSt = vQ
        for w in range(NW):
            e(f"ds_read_b64 v[{vSt+2*w}:{vSt+2*w+1}], v{vT+2} offset:{w*128}")
        e(f"v_and_b32 v{vT+3}, 7, v{vT}")
        if LPR <= 16:
            e(f"v_xor_b32 v{vT+3}, v{vT+3}, v{vT+1}")
            e(f"v_lshlrev_b32 v{vT+3}, 4, v{vT+3}")
        else:
            e(f"v_and_b32 v{vT+4}, 15, v{vT+1}")
            e(f"v_xor_b32 v{vT+3}, v{vT+3}, v{vT+4}")
            e(f"v_lshlrev_b32 v{vT+3}, 4, v{vT+3}")
            e(f"v_lshrrev_b32 v{vT+4}, 4, v{vT+1}")
            e(f"v_lshl_add_u32 v{vT+3}, v{vT+4}, 9, v{vT+3}")
        e(f"v_lshl_add_u32 v{vX}, v{vT}, 10, v{vT+3}")
        pool = list(range(vV, vV + 64)) + list(range(vO, vO + 64))
        need = NW * NP * 8
        assert need <= 128
        addr_hi = {}
        for w in range(NW):
            base = w * RINGB
            blk = base // 65536
            if blk not in addr_hi:
                a = vX + 1 + blk
                e(f"v_add_u32 v{a}, {blk*65536}, v{vX}")
                addr_hi[blk] = a
        for w in range(NW):
            base = w * RINGB
            blk = base // 65536
            for j in range(NP):
                a0 = LPR * j
                pos = (a0 >> 4) * 32 * 16 + (a0 & 15) * 16
                for h in range(2):
                    d = pool[(w * NP + j) * 8 + 4 * h]
                    off = base - blk * 65536 + pos + h * 256
                    assert off < 65536
                    e(f"ds_read_b128 v[{d}:{d+3}], v{addr_hi[blk]} offset:{off}")
        e(f"v_lshlrev_b32 v{vT+5}, 4, v{vT+1}")
        e(f"v_lshl_add_u32 v{vT+5}, v{vT}, 9, v{vT+5}")
        e(f"s_waitcnt lgkmcnt({min(15, NW*NP*2)})")
        e(f"v_mov_b32 v{vT}, v{vSt}")
        for w in range(1, NW):
            e(f"v_max_f32 v{vT}, v{vT}, v{vSt+2*w}")
        e(f"v_mul_f32 v{vMc}, s{sC}, v{vT}")
        for w in range(NW):
            e(f"v_fma_f32 v{vSt+2*w}, v{vSt+2*w}, s{sC}, -v{vMc}")
        for w in range(NW):
            e(f"v_exp_f32 v{vSt+2*w}, v{vSt+2*w}")
        nop(1)
        e(f"v_mul_f32 v{vT}, v{vSt}, v{vSt+1}")
        for w in range(1, NW):
            e(f"v_fma_f32 v{vT}, v{vSt+2*w}, v{vSt+2*w+1}, v{vT}")
        e(f"v_rcp_f32 v{vT}, v{vT}")
        nop(1)
        for w in range(NW):
            e(f"v_mul_f32 v{vSt+2*w}, v{vSt+2*w}, v{vT}")
        e("s_waitcnt lgkmcnt(0)")
        for j in range(NP):
            for x in range(8):
                d0 = pool[j * 8 + x]
                e(f"v_mul_f32 v{d0}, v{d0}, v{vSt}")
            for w in range(1, NW):
                for x in range(8):
                    d0 = pool[j * 8 + x]
                    d = pool[(w * NP + j) * 8 + x]
                    e(f"v_fma_f32 v{d0}, v{d}, v{vSt+2*w}, v{d0}")
            for x in range(4):
                e(f"v_cvt_pk_bf16_f32 v{vS+4*(j&1)+x}, v{pool[j*8+2*x]}, v{pool[j*8+2*x+1]}")
            b = vS + 4 * (j & 1)
            off = f" offset:{j*LPR*16}" if j else ""
            e(f"buffer_store_dwordx4 v[{b}:{b+3}], v{vT+5}, s[{rO}:{rO+3}], 0 offen{off}")
            if NP > 2:
                nop(2)
        if c.stamp:
            e("s_waitcnt vmcnt(0)")
            e(f"s_memrealtime s[{sTS+6}:{sTS+7}]")
            e(f"s_getreg_b32 s{sT2}, hwreg(HW_REG_XCC_ID)")
            e(f"s_getreg_b32 s{sT3}, hwreg(HW_REG_HW_ID)")
            e("s_waitcnt lgkmcnt(0)")
            e(f"s_mov_b32 s{rD}, s{sWS}")
            e(f"s_mov_b32 s{rD+1}, s{sWS+1}")
            e(f"s_mov_b32 s{rD+2}, {256*NW*64}")
            e(f"s_mov_b32 s{rD+3}, 0x20000")
            e(f"s_mul_i32 s{sT}, s2, {NW*64}")
            e(f"s_lshl_b32 s{sCnt}, s{sW}, 6")
            e(f"s_add_u32 s{sT}, s{sT}, s{sCnt}")
            for i in range(8):
                e(f"v_mov_b32 v{vV+i}, s{sTS+i}")
            e(f"v_mov_b32 v{vV+8}, s{sT2}")
            e(f"v_mov_b32 v{vV+9}, s{sT3}")
            e(f"v_mov_b32 v{vV+10}, 0")
            e(f"v_mov_b32 v{vV+11}, 0")
            if c.prog:
                e(f"s_mov_b32 s{rD+2}, {(1<<20) + 256*NW*256}")
                e(f"s_mul_i32 s{sT3}, s2, {NW*256}")
                e(f"s_lshl_b32 s{sCnt}, s{sW}, 8")
                e(f"s_add_u32 s{sT3}, s{sT3}, s{sCnt}")
                e(f"s_add_u32 s{sT3}, s{sT3}, {1<<20}")
                e(f"v_lshlrev_b32 v{vT}, 2, v{vLane}")
                e(f"buffer_store_dword v{vProg}, v{vT}, s[{rD}:{rD+3}], s{sT3} offen")
                nop(2)
            e(f"v_mov_b32 v{vT}, 0")
            e(f"v_cmp_eq_u32 vcc, 0, v{vLane}")
            nop(2)
            e(f"s_and_saveexec_b64 s[{sTS}:{sTS+1}], vcc")
            e(f"buffer_store_dwordx4 v[{vV}:{vV+3}], v{vT}, s[{rD}:{rD+3}], s{sT} offen")
            e(f"buffer_store_dwordx4 v[{vV+4}:{vV+7}], v{vT}, s[{rD}:{rD+3}], s{sT} offen offset:16")
            e(f"buffer_store_dwordx4 v[{vV+8}:{vV+11}], v{vT}, s[{rD}:{rD+3}], s{sT} offen offset:32")
        lab("L_done")
        e("s_endpgm")

        body = "\n".join(self.L)
        out = HEADER
        out += f"; @launch grid=(256,1,1) block=({NW*64},1,1) lds={LDS}\n"
        out += f""".amdgcn_target "amdgcn-amd-amdhsa--gfx950"
.text
.globl {c.kname}
.p2align 8
.type {c.kname},@function
{body}
.section .rodata,"a"
.p2align 6
.amdhsa_kernel {c.kname}
  .amdhsa_next_free_vgpr {c.vnext}
  .amdhsa_next_free_sgpr 102
  .amdhsa_accum_offset {c.vnext}
  .amdhsa_group_segment_fixed_size 0
  .amdhsa_kernarg_size 72
  .amdhsa_user_sgpr_count 2
  .amdhsa_user_sgpr_kernarg_segment_ptr 1
  .amdhsa_system_sgpr_workgroup_id_x 1
.end_amdhsa_kernel
"""
        return out


def f32bits(x):
    import struct
    return struct.unpack("<I", struct.pack("<f", x))[0]


def parse(args):
    kw = {}
    for a in args:
        k, v = a.split("=", 1)
        if k in ("nw", "nsub", "ring", "rot", "vnext", "pd", "xmask", "swap", "pd2", "xm2", "late", "late2", "theta", "lateb", "nshard"):
            v = int(v)
        elif k in ("nocompute", "stamp", "prog", "dyn", "ctl"):
            v = bool(int(v))
        else:
            v = v.replace("+", " ")
        kw[k] = v
    return Cfg(**kw)


if __name__ == "__main__":
    out = sys.argv[1]
    cfg = parse(sys.argv[2:])
    open(out, "w").write(Gen(cfg).gen())
```

```python
import sys
import math

KNAME = "standalone__tree_speculative_verify_tree_attention_over_candidate_token_tree__sampling_kernel"

HEADER = """; Kernarg layout for this problem (72 bytes, ptrs only, base s[0:1]):
"""


class Cfg:
    def __init__(self, **kw):
        self.nw = 4
        self.nsub = 2
        self.ring = 1
        self.kpol = ""
        self.vpol = ""
        self.order = "inter"
        self.rot = 0
        self.kname = KNAME
        self.nocompute = False
        self.stamp = False
        self.vnext = 256
        self.xmask = 0
        self.prog = False
        self.pd = 0
        self.swap = 0
        self.pd2 = 0
        self.xm2 = 0
        self.late = 0
        self.late2 = 0
        self.dyn = False
        self.ctl = False
        self.theta = 32
        self.lateb = 0
        self.nshard = 4
        self.latek = 0
        self.shfirst = False
        self.spol = ""
        self.opol = ""
        self.st1 = "bar"
        for k, v in kw.items():
            assert hasattr(self, k), k
            setattr(self, k, v)


class Gen:
    def __init__(self, cfg):
        self.c = cfg
        self.L = []

    def e(self, s):
        self.L.append("    " + s)

    def lab(self, s):
        self.L.append(s + ":")

    def cm(self, s):
        self.L.append("    ; " + s)

    def nop(self, n):
        while n > 0:
            k = min(n, 16)
            self.e(f"s_nop {k-1}")
            n -= k

    def gen(self):
        c = self.c
        NW, NSUB, R = c.nw, c.nsub, c.ring
        SLOT = 8192
        TILE = SLOT * NSUB
        NTILE = (1 << 20) // TILE
        NT = NTILE // NW
        RINGB = R * 2 * TILE
        assert RINGB >= 16384
        SH = NW * RINGB
        STAT = SH + 16384
        CTR = STAT + NW * 128
        LDS = CTR + (16 if (c.dyn or c.ctl) else 0)
        assert LDS <= 163840, LDS
        NSLOT = R * 2 * NSUB
        self.LDS = LDS
        GPW = max(1, 4 // NW)

        sKA = 4
        sQ, sK, sV, sKT, sVT, sM, sO = 4, 6, 8, 10, 12, 14, 16
        sDBG = 18
        rK, rV, rX, rO = 20, 24, 28, 32
        sW = 36
        sRing = 37
        sNext = 38
        sT = 39
        sCnt = 40
        sC = 41
        sT2, sT3 = 42, 43
        rM = 44
        sSeg = 50
        sWS = 48
        rD = 52
        sTS = 56

        vLane = 1
        vT = 2
        vDma = 10
        vKa = 14
        vVa = 18
        vM, vL = 26, 27
        vMask = 28
        vAl = 30
        vMc = 31
        vS = 32
        vP = 40
        vE = 44
        vQ = 52
        vV = 84
        vO = 148
        vProg = 230
        vX = 212
        vCtrA, vCtrV, vClaim = 231, 232, 233
        vG, vOne, vZero, vFlagR, vFlagW, vFlag = 234, 235, 236, 237, 238, 239
        rG = 72
        sX64, sMode = 76, 77

        e, lab, cm, nop = self.e, self.lab, self.cm, self.nop
        kp = (" " + c.kpol) if c.kpol else ""
        vp = (" " + c.vpol) if c.vpol else ""
        sp = (" " + c.spol) if c.spol else ""

        PD = c.pd if c.pd else NSLOT
        assert 1 <= PD <= NSLOT
        SPT = 2 * NSUB
        SEG = (1 << 20) // NW
        TSTEP = NW * TILE if c.order in ("inter", "inter2") else TILE
        SUBSTEP = NW * SLOT if c.order == "inter2" else SLOT

        def dma_seq(j, dynbase=False):
            tl, p = divmod(j, SPT)
            if dynbase:
                tl = 0
            sub = p % NSUB
            srd, pol = (rK, kp) if p < NSUB else (rV, vp)
            lds = (j % NSLOT) * SLOT
            for h in range(2):
                g = tl * TSTEP + sub * SUBSTEP + h * 4096
                e(f"s_add_u32 s{sT}, s{sNext}, {g}")
                if c.rot:
                    if c.order == "inter":
                        e(f"s_and_b32 s{sT}, s{sT}, {(1<<20)-1}")
                    else:
                        e(f"s_and_b32 s{sT}, s{sT}, {SEG-1}")
                        e(f"s_add_u32 s{sT}, s{sT}, s{sSeg}")
                e(f"s_add_u32 m0, s{sRing}, {lds + h*4096}")
                e("s_nop 0")
                for i in range(4):
                    off = f" offset:{i*1024}" if i else ""
                    e(f"buffer_load_dwordx4 v{vDma+i}, s[{srd}:{srd+3}], s{sT} offen{off}{pol} lds")

        def slot_lds(j):
            return (j % NSLOT) * SLOT

        lab(c.kname)
        e(f"s_cmp_ge_u32 s2, 256")
        e(f"s_cbranch_scc1 L_done")
        if c.xmask:
            e(f"s_getreg_b32 s3, hwreg(HW_REG_XCC_ID, 0, 4)")
            e(f"s_lshr_b32 s3, {c.xmask}, s3")
            e(f"s_and_b32 s3, s3, 1")
            e(f"s_cmp_eq_u32 s3, 0")
            e(f"s_cbranch_scc1 L_done")
        if c.swap:
            e(f"s_xor_b32 s2, s2, {c.swap}")
        e(f"s_load_dwordx16 s[4:19], s[0:1], 0")
        if c.stamp:
            e(f"s_load_dwordx2 s[{sWS}:{sWS+1}], s[0:1], 64")
            e(f"s_memrealtime s[{sTS}:{sTS+1}]")
        cm("lane-dependent addresses")
        e(f"v_and_b32 v{vLane}, 63, v0")
        e(f"v_lshrrev_b32 v{vT}, 6, v0")
        e(f"v_lshrrev_b32 v{vT+1}, 5, v{vLane}")
        e(f"v_readfirstlane_b32 s{sW}, v{vT}")
        e(f"v_and_b32 v{vT+2}, 31, v{vLane}")
        e(f"v_lshlrev_b32 v{vT+3}, 1, v{vT+1}")
        e(f"v_xor_b32 v{vT+2}, v{vT+2}, v{vT+3}")
        e(f"v_lshlrev_b32 v{vT+2}, 4, v{vT+2}")
        e(f"v_lshl_add_u32 v{vDma}, v{vT+1}, 9, v{vT+2}")
        for i in range(1, 4):
            e(f"v_xor_b32 v{vDma+i}, {i*64}, v{vDma}")
        e(f"v_and_b32 v{vT}, 15, v{vLane}")
        e(f"v_lshrrev_b32 v{vT+1}, 4, v{vLane}")
        e(f"v_and_b32 v{vT+2}, 7, v{vT}")
        e(f"v_lshlrev_b32 v{vT+2}, 5, v{vT+2}")
        e(f"v_lshlrev_b32 v{vT+3}, 4, v{vT+1}")
        e(f"v_xor_b32 v{vT+2}, v{vT+2}, v{vT+3}")
        e(f"v_lshl_add_u32 v{vKa}, v{vT}, 9, v{vT+2}")
        for s in range(1, 4):
            e(f"v_xor_b32 v{vKa+s}, {s*64}, v{vKa}")
        e(f"v_lshrrev_b32 v{vT}, 2, v{vLane}")
        e(f"v_and_b32 v{vT+1}, 7, v{vT}")
        e(f"v_lshlrev_b32 v{vT+1}, 5, v{vT+1}")
        e(f"v_and_b32 v{vT+2}, 3, v{vLane}")
        e(f"v_lshlrev_b32 v{vT+2}, 3, v{vT+2}")
        e(f"v_or_b32 v{vT+1}, v{vT+1}, v{vT+2}")
        e(f"v_lshl_add_u32 v{vVa}, v{vT}, 9, v{vT+1}")
        for u in range(1, 8):
            e(f"v_xor_b32 v{vVa+u}, {u*32}, v{vVa}")
        e(f"v_and_b32 v{vT}, 7, v{vLane}")
        e(f"v_lshlrev_b32 v{vT}, 4, v{vT}")
        e(f"v_bfe_u32 v{vT+1}, v{vLane}, 4, 1")
        e(f"v_lshl_add_u32 v{vT+4}, v{vT+1}, 3, v{vT}")
        e(f"s_mul_i32 s{sRing}, s{sW}, {RINGB}")
        if c.order == "inter2":
            e(f"s_mul_i32 s{sNext}, s{sW}, {SLOT}")
        elif c.order == "inter":
            e(f"s_mul_i32 s{sNext}, s{sW}, {TILE}")
            if c.rot:
                e(f"s_mul_i32 s{sT2}, s2, {c.rot*TILE}")
                e(f"s_add_u32 s{sNext}, s{sNext}, s{sT2}")
        else:
            if c.rot:
                e(f"s_mul_i32 s{sSeg}, s{sW}, {SEG}")
                e(f"s_mul_i32 s{sNext}, s2, {c.rot*TILE}")
            else:
                e(f"s_mul_i32 s{sNext}, s{sW}, {SEG}")
        e(f"s_mov_b32 s{sC}, {hex(f32bits(0.0625*math.log2(math.e)))}")
        e(f"s_lshl_b32 s{sT2}, s2, 20")
        e(f"s_lshr_b32 s{sT3}, s2, 12")
        e("s_waitcnt lgkmcnt(0)")
        if c.stamp and c.st1 == "karg":
            e(f"s_memrealtime s[{sTS+2}:{sTS+3}]")
        cm("SRDs")
        e(f"s_add_u32 s{rK}, s{sK}, s{sT2}")
        e(f"s_addc_u32 s{rK+1}, s{sK+1}, s{sT3}")
        e(f"s_mov_b32 s{rK+2}, {1<<20}")
        e(f"s_mov_b32 s{rK+3}, 0x20000")
        e(f"s_add_u32 s{rV}, s{sV}, s{sT2}")
        e(f"s_addc_u32 s{rV+1}, s{sV+1}, s{sT3}")
        e(f"s_mov_b32 s{rV+2}, {1<<20}")
        e(f"s_mov_b32 s{rV+3}, 0x20000")
        if not c.shfirst:
            cm("first K slot")
            dma_seq(0)
        cm("shared region: group 0,1 = Q rows 0-7, 8-15; 2 = tree K; 3 = tree V")
        for gi in range(GPW):
            if GPW == 1:
                e(f"s_and_b32 s{sT2}, s{sW}, 3")
            else:
                e(f"s_mul_i32 s{sT2}, s{sW}, {GPW}")
                e(f"s_add_u32 s{sT2}, s{sT2}, {gi}")
            e(f"s_lshl_b32 s{sT3}, s2, 13")
            e(f"s_add_u32 s{rX}, s{sQ}, s{sT3}")
            e(f"s_addc_u32 s{rX+1}, s{sQ+1}, 0")
            e(f"s_lshl_b32 s{sT3}, s2, 12")
            e(f"s_cmp_eq_u32 s{sT2}, 2")
            e(f"s_cselect_b32 s{rO}, s{sKT}, s{sVT}")
            e(f"s_cselect_b32 s{rO+1}, s{sKT+1}, s{sVT+1}")
            e(f"s_add_u32 s{rO}, s{rO}, s{sT3}")
            e(f"s_addc_u32 s{rO+1}, s{rO+1}, 0")
            e(f"s_cmp_lt_u32 s{sT2}, 2")
            e(f"s_cselect_b32 s{rX}, s{rX}, s{rO}")
            e(f"s_cselect_b32 s{rX+1}, s{rX+1}, s{rO+1}")
            e(f"s_mov_b32 s{rX+2}, 8192")
            e(f"s_cselect_b32 s{rX+2}, s{rX+2}, 4096")
            e(f"s_mov_b32 s{rX+3}, 0x20000")
            e(f"s_cmp_eq_u32 s{sT2}, 1")
            e(f"s_cselect_b32 s{sT}, 4096, 0")
            e(f"s_lshl_b32 s{sT2}, s{sT2}, 12")
            e(f"s_add_u32 m0, s{sT2}, {SH}")
            e("s_nop 0")
            for i in range(4):
                off = f" offset:{i*1024}" if i else ""
                e(f"buffer_load_dwordx4 v{vDma+i}, s[{rX}:{rX+3}], s{sT} offen{off}{sp} lds")
        cm("tree mask (8 bytes per lane)")
        e(f"s_lshr_b32 s{sT2}, s2, 3")
        e(f"s_lshl_b32 s{sT2}, s{sT2}, 7")
        e(f"s_add_u32 s{rM}, s{sM}, s{sT2}")
        e(f"s_addc_u32 s{rM+1}, s{sM+1}, 0")
        e(f"s_mov_b32 s{rM+2}, 128")
        e(f"s_mov_b32 s{rM+3}, 0x20000")
        e(f"buffer_load_dwordx2 v[{vMask}:{vMask+1}], v{vT+4}, s[{rM}:{rM+3}], 0 offen{sp}")
        def stream(PD, sfx, late=0):
            cm("rest of the prefetch window")
            for j in range(0 if c.shfirst else 1, PD):
                dma_seq(j)
            cm("output SRD")
            e(f"s_lshl_b32 s{sT3}, s2, 13")
            e(f"s_add_u32 s{rO}, s{sO}, s{sT3}")
            e(f"s_addc_u32 s{rO+1}, s{sO+1}, 0")
            e(f"s_mov_b32 s{rO+2}, 8192")
            e(f"s_mov_b32 s{rO+3}, 0x20000")
            cm("state init")
            for i in range(64):
                e(f"v_mov_b32 v{vO+i}, 0")
            e(f"v_mov_b32 v{vM}, 0xff800000")
            e(f"v_mov_b32 v{vL}, 0")
            if c.ctl:
                sh_per = 256 // c.nshard
                e(f"s_lshr_b32 s{sT2}, s2, 3")
                e(f"s_and_b32 s{sT2}, s{sT2}, {c.nshard-1}")
                e(f"s_lshl_b32 s{sT2}, s{sT2}, {6 if c.nshard <= 4 else 5}")
                e(f"s_add_u32 s{rG}, s{sDBG}, s{sT2}")
                e(f"s_addc_u32 s{rG+1}, s{sDBG+1}, 0")
                e(f"s_cmp_eq_u32 s{sW}, 0")
                e(f"s_cselect_b32 s{rG+2}, 4, 0")
                e(f"s_mov_b32 s{rG+3}, 0x20000")
                e(f"s_cselect_b32 s{sT2}, 0, 4")
                e(f"s_add_u32 s{sT2}, s{sT2}, {CTR}")
                e(f"v_mov_b32 v{vFlagW}, s{sT2}")
                e(f"v_mov_b32 v{vFlagR}, {CTR}")
                e(f"v_mov_b32 v{vG}, 0")
                e(f"v_mov_b32 v{vOne}, 1")
                e(f"v_mov_b32 v{vZero}, 0")
                e(f"ds_write_b32 v{vFlagR}, v{vOne}")
                e(f"s_mov_b32 s{sX64}, 0")
            if c.dyn:
                e(f"v_mov_b32 v{vCtrA}, {CTR}")
                e(f"v_mov_b32 v{vCtrV}, {NW}")
                e(f"ds_write_b32 v{vCtrA}, v{vCtrV}")
                e(f"v_mov_b32 v{vCtrV}, 1")
            wait0 = min(63, (PD if c.shfirst else PD - 1) * 8)
            e(f"s_waitcnt vmcnt({wait0}) lgkmcnt(0)" if (c.dyn or c.ctl) else f"s_waitcnt vmcnt({wait0})")
            e("s_barrier")
            if c.stamp and c.st1 == "bar":
                e(f"s_memrealtime s[{sTS+2}:{sTS+3}]")
            cm("Q fragments")
            for s in range(4):
                e(f"v_add_u32 v{vX+s}, {SH}, v{vKa+s}")
            for s in range(8):
                e(f"ds_read_b128 v[{vQ+4*s}:{vQ+4*s+3}], v{vX+(s&3)} offset:{(s>>2)*256}")

            def softmax_pv(nS, tree=False):
                if nS == 8:
                    e(f"v_max3_f32 v{vT}, v{vS}, v{vS+1}, v{vS+2}")
                    e(f"v_max3_f32 v{vT+1}, v{vS+3}, v{vS+4}, v{vS+5}")
                    e(f"v_max3_f32 v{vT}, v{vT}, v{vS+6}, v{vS+7}")
                    e(f"v_max_f32 v{vT}, v{vT}, v{vT+1}")
                else:
                    e(f"v_max3_f32 v{vT}, v{vS}, v{vS+1}, v{vS+2}")
                    e(f"v_max_f32 v{vT}, v{vT}, v{vS+3}")
                e(f"v_mov_b32 v{vT+1}, v{vT}")
                nop(2)
                e(f"v_permlane32_swap_b32 v{vT}, v{vT+1}")
                nop(1)
                e(f"v_max_f32 v{vT}, v{vT}, v{vT+1}")
                e(f"v_mov_b32 v{vT+1}, v{vT}")
                nop(2)
                e(f"v_permlane16_swap_b32 v{vT}, v{vT+1}")
                nop(1)
                e(f"v_max3_f32 v{vT}, v{vT}, v{vT+1}, v{vM}")
                e(f"v_mul_f32 v{vMc}, s{sC}, v{vT}")
                e(f"v_fma_f32 v{vAl}, v{vM}, s{sC}, -v{vMc}")
                e(f"v_mov_b32 v{vM}, v{vT}")
                for i in range(nS):
                    e(f"v_fma_f32 v{vE+i}, v{vS+i}, s{sC}, -v{vMc}")
                e(f"v_exp_f32 v{vAl}, v{vAl}")
                for i in range(nS):
                    e(f"v_exp_f32 v{vE+i}, v{vE+i}")
                nop(1)
                e(f"v_mul_f32 v{vL}, v{vL}, v{vAl}")
                for i in range(0, nS, 2):
                    e(f"v_cvt_pk_bf16_f32 v{vP+i//2}, v{vE+i}, v{vE+i+1}")
                e(f"v_add_f32 v{vT}, v{vE}, v{vE+1}")
                e(f"v_add_f32 v{vT+1}, v{vE+2}, v{vE+3}")
                if nS == 8:
                    e(f"v_add_f32 v{vT+2}, v{vE+4}, v{vE+5}")
                    e(f"v_add_f32 v{vT+3}, v{vE+6}, v{vE+7}")
                    e(f"v_add_f32 v{vT}, v{vT}, v{vT+2}")
                    e(f"v_add_f32 v{vT+1}, v{vT+1}, v{vT+3}")
                e(f"v_add_f32 v{vT}, v{vT}, v{vT+1}")
                e(f"v_add_f32 v{vL}, v{vL}, v{vT}")
                for i in range(0, 64, 2):
                    e(f"v_pk_mul_f32 v[{vO+i}:{vO+i+1}], v[{vO+i}:{vO+i+1}], v[{vAl}:{vAl+1}] op_sel_hi:[1,0]")

            def k_reads(off, dst):
                for s in range(8):
                    o = off + (s >> 2) * 256
                    e(f"ds_read_b128 v[{dst+4*s}:{dst+4*s+3}], v{vKa+(s&3)} offset:{o}")

            def qk_mfma(src, acc):
                for s in range(8):
                    cin = "0" if s == 0 else f"v[{acc}:{acc+3}]"
                    e(f"v_mfma_f32_16x16x32_bf16 v[{acc}:{acc+3}], v[{src+4*s}:{src+4*s+3}], v[{vQ+4*s}:{vQ+4*s+3}], {cin}")

            def v_reads(off, sub, addr=vVa):
                for t in range(16):
                    o = off + (t >> 3) * 256
                    d = vV + 4 * t + 2 * sub
                    e(f"ds_read_b64_tr_b16 v[{d}:{d+1}], v{addr+(t&7)} offset:{o}")

            def pv_mfma(k32):
                for t in range(16):
                    o = vO + 4 * t
                    if k32:
                        e(f"v_mfma_f32_16x16x32_bf16 v[{o}:{o+3}], v[{vV+4*t}:{vV+4*t+3}], v[{vP}:{vP+3}], v[{o}:{o+3}]")
                    else:
                        e(f"v_mfma_f32_16x16x16_bf16 v[{o}:{o+3}], v[{vV+4*t}:{vV+4*t+1}], v[{vP}:{vP+1}], v[{o}:{o+3}]")

            cm("tree tile: wave 0 only")
            e(f"s_cmp_lg_u32 s{sW}, 0")
            e(f"s_cbranch_scc1 L_notree{sfx}")
            if not c.nocompute:
                for s in range(4):
                    e(f"v_add_u32 v{vX+s}, {SH+8192}, v{vKa+s}")
                for s in range(8):
                    e(f"ds_read_b128 v[{vV+4*s}:{vV+4*s+3}], v{vX+(s&3)} offset:{(s>>2)*256}")
                e("s_waitcnt lgkmcnt(0)")
                qk_mfma(vV, vS)
                for u in range(8):
                    e(f"v_and_b32 v{vX+u}, 0xfff, v{vVa+u}")
                for u in range(8):
                    e(f"v_add_u32 v{vX+u}, {SH+12288}, v{vX+u}")
                e(f"v_lshlrev_b32 v{vE}, 16, v{vMask}")
                e(f"v_and_b32 v{vE+1}, 0xffff0000, v{vMask}")
                e(f"v_lshlrev_b32 v{vE+2}, 16, v{vMask+1}")
                e(f"v_and_b32 v{vE+3}, 0xffff0000, v{vMask+1}")
                e(f"s_mov_b32 s{sT2}, {hex(f32bits(-1.6e10))}")
                for i in range(4):
                    e(f"v_sub_f32 v{vE+i}, 1.0, v{vE+i}")
                v_reads(0, 0, addr=vX)
                e(f"v_cmp_gt_u32 vcc, 32, v{vLane}")
                e(f"v_mov_b32 v{vT+3}, 0xff800000")
                nop(4)
                for i in range(4):
                    e(f"v_fma_f32 v{vS+i}, v{vE+i}, s{sT2}, v{vS+i}")
                for i in range(4):
                    e(f"v_cndmask_b32 v{vS+i}, v{vT+3}, v{vS+i}, vcc")
                softmax_pv(4, tree=True)
                e("s_waitcnt lgkmcnt(0)")
                pv_mfma(False)
            lab(f"L_notree{sfx}")
            cm("ring-relative addresses")
            for s in range(4):
                e(f"v_add_u32 v{vKa+s}, s{sRing}, v{vKa+s}")
            for u in range(8):
                e(f"v_add_u32 v{vVa+u}, s{sRing}, v{vVa+u}")
            e("s_waitcnt lgkmcnt(0)")

            def body(last):
                for j in range(NSLOT):
                    p = j % SPT
                    sub = p % NSUB
                    after = min(PD - 1, NSLOT - 1 - j) if last else PD - 1
                    if c.latek and p == 1:
                        after = 0
                    e(f"s_waitcnt vmcnt({min(63, after*8)})")
                    if not c.nocompute:
                        if p < NSUB:
                            k_reads(slot_lds(j), vV + 32 * sub)
                        else:
                            v_reads(slot_lds(j), sub)
                        e("s_waitcnt lgkmcnt(0)")
                    issue = (not last) or j + PD < NSLOT
                    kissue = c.latek and p == 1 and ((not last) or j - 1 + PD < NSLOT)
                    if c.latek and p == 0:
                        issue = False
                    if kissue and c.latek == 2:
                        dma_seq(j - 1 + PD)
                    if issue and not (late >> p) & 1:
                        dma_seq(j + PD)
                    if not c.nocompute:
                        if p < NSUB:
                            qk_mfma(vV + 32 * sub, vS + 4 * sub)
                            if p == NSUB - 1:
                                nop(8)
                                softmax_pv(4 * NSUB)
                        elif p == SPT - 1:
                            pv_mfma(NSUB == 2)
                    if kissue and c.latek == 3:
                        assert (late >> p) & 1
                        dma_seq(j - 1 + PD)
                    if issue and (late >> p) & 1:
                        dma_seq(j + PD)

            if c.dyn:
                assert R == 1 and PD == NSLOT and not c.rot and c.order == "inter"

                def compute(p):
                    sub = p % NSUB
                    if p < NSUB:
                        qk_mfma(vV + 32 * sub, vS + 4 * sub)
                        if p == NSUB - 1:
                            nop(8)
                            softmax_pv(4 * NSUB)
                    elif p == SPT - 1:
                        pv_mfma(NSUB == 2)

                def reads(p):
                    sub = p % NSUB
                    if p < NSUB:
                        k_reads(slot_lds(p), vV + 32 * sub)
                    else:
                        v_reads(slot_lds(p), sub)
                    e("s_waitcnt lgkmcnt(0)")

                if c.prog:
                    e(f"s_mov_b32 s{sCnt}, 0")
                lab(f"L_loop{sfx}")
                e("s_mov_b64 exec, 1")
                e(f"ds_add_rtn_u32 v{vClaim}, v{vCtrA}, v{vCtrV}")
                e("s_mov_b64 exec, -1")
                for p in range(SPT):
                    e(f"s_waitcnt vmcnt({(SPT-1)*8})")
                    reads(p)
                    if p == 0:
                        e(f"v_readfirstlane_b32 s{sNext}, v{vClaim}")
                        e(f"s_cmp_ge_u32 s{sNext}, {NTILE}")
                        e(f"s_cbranch_scc1 L_last{sfx}")
                        e(f"s_mul_i32 s{sNext}, s{sNext}, {TILE}")
                    dma_seq(p, dynbase=True)
                    compute(p)
                if c.prog:
                    e(f"s_memrealtime s[{sTS+8}:{sTS+9}]")
                    e("s_waitcnt lgkmcnt(0)")
                    e(f"s_mov_b32 m0, s{sCnt}")
                    e(f"s_add_u32 s{sCnt}, s{sCnt}, 1")
                    e(f"v_writelane_b32 v{vProg}, s{sTS+8}, m0")
                e(f"s_branch L_loop{sfx}")
                lab(f"L_last{sfx}")
                for p in range(SPT):
                    if p > 0:
                        e(f"s_waitcnt vmcnt({(SPT-1-p)*8})")
                        reads(p)
                    compute(p)
                return
            self.uid = getattr(self, "uid", 0)

            def body_ctl(last):
                assert PD == 1 and R == 1
                for j in range(NSLOT):
                    p = j % SPT
                    sub = p % NSUB
                    e(f"s_waitcnt vmcnt({1 if j == 0 else 0})")
                    if p < NSUB:
                        k_reads(slot_lds(j), vV + 32 * sub)
                    else:
                        v_reads(slot_lds(j), sub)
                    e(f"ds_read_b32 v{vFlag}, v{vFlagR}")
                    if j == 1:
                        e(f"v_readfirstlane_b32 s{sT2}, v{vG}")
                        e(f"s_sub_u32 s{sT2}, s{sX64}, s{sT2}")
                        e(f"s_cmp_lt_i32 s{sT2}, {c.theta}")
                        e(f"s_cselect_b32 s{sT2}, 1, 0")
                        e(f"v_mov_b32 v{vT}, s{sT2}")
                        e(f"ds_write_b32 v{vFlagW}, v{vT}")
                    e("s_waitcnt lgkmcnt(0)")
                    issue = (not last) or j + PD < NSLOT
                    la, lb = (late >> p) & 1, (c.lateb >> p) & 1
                    self.uid += 1
                    u = self.uid
                    if issue and la != lb:
                        e(f"v_readfirstlane_b32 s{sMode}, v{vFlag}")
                        e(f"s_cmp_eq_u32 s{sMode}, {0 if la else 1}")
                        e(f"s_cbranch_scc1 L_e{u}")
                        dma_seq(j + PD)
                        lab(f"L_e{u}")
                    elif issue and not la:
                        dma_seq(j + PD)
                    if p < NSUB:
                        qk_mfma(vV + 32 * sub, vS + 4 * sub)
                        if p == NSUB - 1:
                            nop(8)
                            softmax_pv(4 * NSUB)
                    elif p == SPT - 1:
                        pv_mfma(NSUB == 2)
                    if issue and la != lb:
                        e(f"s_cmp_lg_u32 s{sMode}, {0 if la else 1}")
                        e(f"s_cbranch_scc1 L_l{u}")
                        dma_seq(j + PD)
                        lab(f"L_l{u}")
                    elif issue and la:
                        dma_seq(j + PD)
                if not last:
                    e("s_mov_b64 exec, 1")
                    e(f"v_mov_b32 v{vG}, 1")
                    e(f"buffer_atomic_add v{vG}, v{vZero}, s[{rG}:{rG+3}], 0 offen sc0")
                    e("s_mov_b64 exec, -1")
                    e(f"s_add_u32 s{sX64}, s{sX64}, {256 // c.nshard}")

            if c.ctl:
                body = body_ctl
            nbody = NT // R
            assert nbody * R == NT
            e(f"s_mov_b32 s{sCnt}, {nbody-1}")
            lab(f"L_loop{sfx}")
            body(False)
            if c.prog:
                e(f"s_memrealtime s[{sTS+8}:{sTS+9}]")
                e("s_waitcnt lgkmcnt(0)")
                e(f"s_sub_u32 s{sT2}, {nbody-1}, s{sCnt}")
                e(f"s_mov_b32 m0, s{sT2}")
                e("s_nop 1")
                e(f"v_writelane_b32 v{vProg}, s{sTS+8}, m0")
            e(f"s_add_u32 s{sNext}, s{sNext}, {R*TSTEP}")
            e(f"s_sub_u32 s{sCnt}, s{sCnt}, 1")
            e(f"s_cmp_lg_u32 s{sCnt}, 0")
            e(f"s_cbranch_scc1 L_loop{sfx}")
            body(True)

        if c.pd2:
            e(f"s_getreg_b32 s{sT2}, hwreg(HW_REG_XCC_ID, 0, 4)")
            e(f"s_lshr_b32 s{sT2}, {c.xm2}, s{sT2}")
            e(f"s_and_b32 s{sT2}, s{sT2}, 1")
            e(f"s_cmp_eq_u32 s{sT2}, 1")
            e("s_cbranch_scc1 L_alt")
            stream(PD, "", c.late)
            e("s_branch L_merge")
            lab("L_alt")
            stream(c.pd2, "_b", c.late2)
            lab("L_merge")
        else:
            stream(PD, "", c.late)
        if c.stamp:
            e(f"s_memrealtime s[{sTS+4}:{sTS+5}]")
        cm("merge the per-wave partials")
        e(f"v_mov_b32 v{vT+1}, v{vL}")
        nop(2)
        e(f"v_permlane32_swap_b32 v{vL}, v{vT+1}")
        nop(1)
        e(f"v_add_f32 v{vL}, v{vL}, v{vT+1}")
        e(f"v_mov_b32 v{vT+1}, v{vL}")
        nop(2)
        e(f"v_permlane16_swap_b32 v{vL}, v{vT+1}")
        nop(1)
        e(f"v_add_f32 v{vL}, v{vL}, v{vT+1}")
        e(f"v_and_b32 v{vT}, 15, v{vLane}")
        e(f"s_lshl_b32 s{sT2}, s{sW}, 7")
        e(f"s_add_u32 s{sT2}, s{sT2}, {STAT}")
        e(f"v_lshlrev_b32 v{vT+1}, 3, v{vT}")
        e(f"v_add_u32 v{vT+1}, s{sT2}, v{vT+1}")
        e(f"ds_write_b64 v{vT+1}, v[{vM}:{vM+1}]")
        e(f"v_lshrrev_b32 v{vT+1}, 4, v{vLane}")
        e(f"v_lshrrev_b32 v{vT+2}, 1, v{vT+1}")
        e(f"v_and_b32 v{vT+3}, 7, v{vT}")
        e(f"v_xor_b32 v{vT+2}, v{vT+2}, v{vT+3}")
        e(f"v_and_b32 v{vT+1}, 1, v{vT+1}")
        e(f"v_lshl_add_u32 v{vT+2}, v{vT+1}, 4, v{vT+2}")
        e(f"v_lshlrev_b32 v{vT+2}, 4, v{vT+2}")
        e(f"v_lshl_add_u32 v{vT+2}, v{vT}, 10, v{vT+2}")
        e(f"v_add_u32 v{vX}, s{sRing}, v{vT+2}")
        for j in range(1, 4):
            e(f"v_xor_b32 v{vX+j}, {j*32}, v{vX}")
        nop(4)
        for t in range(16):
            o_ = ((t >> 2) & 1) * 128 + (t >> 3) * 512
            e(f"ds_write_b128 v{vX+(t&3)}, v[{vO+4*t}:{vO+4*t+3}] offset:{o_}")
        e("s_waitcnt lgkmcnt(0)")
        e("s_barrier")
        RPW = 16 // NW
        LPR = 64 // RPW
        NP = 32 // LPR
        lg = int(math.log2(LPR))
        e(f"v_lshrrev_b32 v{vT}, {lg}, v{vLane}")
        e(f"s_mul_i32 s{sT2}, s{sW}, {RPW}")
        e(f"v_add_u32 v{vT}, s{sT2}, v{vT}")
        e(f"v_and_b32 v{vT+1}, {LPR-1}, v{vLane}")
        e(f"v_lshlrev_b32 v{vT+2}, 3, v{vT}")
        e(f"v_add_u32 v{vT+2}, {STAT}, v{vT+2}")
        vSt = vE
        vSt = vQ
        for w in range(NW):
            e(f"ds_read_b64 v[{vSt+2*w}:{vSt+2*w+1}], v{vT+2} offset:{w*128}")
        e(f"v_and_b32 v{vT+3}, 7, v{vT}")
        if LPR <= 16:
            e(f"v_xor_b32 v{vT+3}, v{vT+3}, v{vT+1}")
            e(f"v_lshlrev_b32 v{vT+3}, 4, v{vT+3}")
        else:
            e(f"v_and_b32 v{vT+4}, 15, v{vT+1}")
            e(f"v_xor_b32 v{vT+3}, v{vT+3}, v{vT+4}")
            e(f"v_lshlrev_b32 v{vT+3}, 4, v{vT+3}")
            e(f"v_lshrrev_b32 v{vT+4}, 4, v{vT+1}")
            e(f"v_lshl_add_u32 v{vT+3}, v{vT+4}, 9, v{vT+3}")
        e(f"v_lshl_add_u32 v{vX}, v{vT}, 10, v{vT+3}")
        pool = list(range(vV, vV + 64)) + list(range(vO, vO + 64))
        need = NW * NP * 8
        assert need <= 128
        addr_hi = {}
        for w in range(NW):
            base = w * RINGB
            blk = base // 65536
            if blk not in addr_hi:
                a = vX + 1 + blk
                e(f"v_add_u32 v{a}, {blk*65536}, v{vX}")
                addr_hi[blk] = a
        for w in range(NW):
            base = w * RINGB
            blk = base // 65536
            for j in range(NP):
                a0 = LPR * j
                pos = (a0 >> 4) * 32 * 16 + (a0 & 15) * 16
                for h in range(2):
                    d = pool[(w * NP + j) * 8 + 4 * h]
                    off = base - blk * 65536 + pos + h * 256
                    assert off < 65536
                    e(f"ds_read_b128 v[{d}:{d+3}], v{addr_hi[blk]} offset:{off}")
        e(f"v_lshlrev_b32 v{vT+5}, 4, v{vT+1}")
        e(f"v_lshl_add_u32 v{vT+5}, v{vT}, 9, v{vT+5}")
        e(f"s_waitcnt lgkmcnt({min(15, NW*NP*2)})")
        e(f"v_mov_b32 v{vT}, v{vSt}")
        for w in range(1, NW):
            e(f"v_max_f32 v{vT}, v{vT}, v{vSt+2*w}")
        e(f"v_mul_f32 v{vMc}, s{sC}, v{vT}")
        for w in range(NW):
            e(f"v_fma_f32 v{vSt+2*w}, v{vSt+2*w}, s{sC}, -v{vMc}")
        for w in range(NW):
            e(f"v_exp_f32 v{vSt+2*w}, v{vSt+2*w}")
        nop(1)
        e(f"v_mul_f32 v{vT}, v{vSt}, v{vSt+1}")
        for w in range(1, NW):
            e(f"v_fma_f32 v{vT}, v{vSt+2*w}, v{vSt+2*w+1}, v{vT}")
        e(f"v_rcp_f32 v{vT}, v{vT}")
        nop(1)
        for w in range(NW):
            e(f"v_mul_f32 v{vSt+2*w}, v{vSt+2*w}, v{vT}")
        e("s_waitcnt lgkmcnt(0)")
        for j in range(NP):
            for x in range(8):
                d0 = pool[j * 8 + x]
                e(f"v_mul_f32 v{d0}, v{d0}, v{vSt}")
            for w in range(1, NW):
                for x in range(8):
                    d0 = pool[j * 8 + x]
                    d = pool[(w * NP + j) * 8 + x]
                    e(f"v_fma_f32 v{d0}, v{d}, v{vSt+2*w}, v{d0}")
            for x in range(4):
                e(f"v_cvt_pk_bf16_f32 v{vS+4*(j&1)+x}, v{pool[j*8+2*x]}, v{pool[j*8+2*x+1]}")
            b = vS + 4 * (j & 1)
            off = f" offset:{j*LPR*16}" if j else ""
            e(f"buffer_store_dwordx4 v[{b}:{b+3}], v{vT+5}, s[{rO}:{rO+3}], 0 offen{off}{(' ' + c.opol) if c.opol else ''}")
            if NP > 2:
                nop(2)
        if c.stamp:
            e("s_waitcnt vmcnt(0)")
            e(f"s_memrealtime s[{sTS+6}:{sTS+7}]")
            e(f"s_getreg_b32 s{sT2}, hwreg(HW_REG_XCC_ID)")
            e(f"s_getreg_b32 s{sT3}, hwreg(HW_REG_HW_ID)")
            e("s_waitcnt lgkmcnt(0)")
            e(f"s_mov_b32 s{rD}, s{sWS}")
            e(f"s_mov_b32 s{rD+1}, s{sWS+1}")
            e(f"s_mov_b32 s{rD+2}, {256*NW*64}")
            e(f"s_mov_b32 s{rD+3}, 0x20000")
            e(f"s_mul_i32 s{sT}, s2, {NW*64}")
            e(f"s_lshl_b32 s{sCnt}, s{sW}, 6")
            e(f"s_add_u32 s{sT}, s{sT}, s{sCnt}")
            for i in range(8):
                e(f"v_mov_b32 v{vV+i}, s{sTS+i}")
            e(f"v_mov_b32 v{vV+8}, s{sT2}")
            e(f"v_mov_b32 v{vV+9}, s{sT3}")
            e(f"v_mov_b32 v{vV+10}, 0")
            e(f"v_mov_b32 v{vV+11}, 0")
            if c.prog:
                e(f"s_mov_b32 s{rD+2}, {(1<<20) + 256*NW*256}")
                e(f"s_mul_i32 s{sT3}, s2, {NW*256}")
                e(f"s_lshl_b32 s{sCnt}, s{sW}, 8")
                e(f"s_add_u32 s{sT3}, s{sT3}, s{sCnt}")
                e(f"s_add_u32 s{sT3}, s{sT3}, {1<<20}")
                e(f"v_lshlrev_b32 v{vT}, 2, v{vLane}")
                e(f"buffer_store_dword v{vProg}, v{vT}, s[{rD}:{rD+3}], s{sT3} offen")
                nop(2)
            e(f"v_mov_b32 v{vT}, 0")
            e(f"v_cmp_eq_u32 vcc, 0, v{vLane}")
            nop(2)
            e(f"s_and_saveexec_b64 s[{sTS}:{sTS+1}], vcc")
            e(f"buffer_store_dwordx4 v[{vV}:{vV+3}], v{vT}, s[{rD}:{rD+3}], s{sT} offen")
            e(f"buffer_store_dwordx4 v[{vV+4}:{vV+7}], v{vT}, s[{rD}:{rD+3}], s{sT} offen offset:16")
            e(f"buffer_store_dwordx4 v[{vV+8}:{vV+11}], v{vT}, s[{rD}:{rD+3}], s{sT} offen offset:32")
        lab("L_done")
        e("s_endpgm")

        body = "\n".join(self.L)
        out = HEADER
        out += f"; @launch grid=(256,1,1) block=({NW*64},1,1) lds={LDS}\n"
        out += f""".amdgcn_target "amdgcn-amd-amdhsa--gfx950"
.text
.globl {c.kname}
.p2align 8
.type {c.kname},@function
{body}
.section .rodata,"a"
.p2align 6
.amdhsa_kernel {c.kname}
  .amdhsa_next_free_vgpr {c.vnext}
  .amdhsa_next_free_sgpr 102
  .amdhsa_accum_offset {c.vnext}
  .amdhsa_group_segment_fixed_size 0
  .amdhsa_kernarg_size 72
  .amdhsa_user_sgpr_count 2
  .amdhsa_user_sgpr_kernarg_segment_ptr 1
  .amdhsa_system_sgpr_workgroup_id_x 1
.end_amdhsa_kernel
"""
        return out


def f32bits(x):
    import struct
    return struct.unpack("<I", struct.pack("<f", x))[0]


def parse(args):
    kw = {}
    for a in args:
        k, v = a.split("=", 1)
        if k in ("nw", "nsub", "ring", "rot", "vnext", "pd", "xmask", "swap", "pd2", "xm2", "late", "late2", "theta", "lateb", "nshard", "latek"):
            v = int(v)
        elif k in ("nocompute", "stamp", "prog", "dyn", "ctl", "shfirst"):
            v = bool(int(v))
        else:
            v = v.replace("+", " ")
        kw[k] = v
    return Cfg(**kw)


if __name__ == "__main__":
    out = sys.argv[1]
    cfg = parse(sys.argv[2:])
    open(out, "w").write(Gen(cfg).gen())
```

```python
import sys
import math

KNAME = "standalone__tree_speculative_verify_tree_attention_over_candidate_token_tree__sampling_kernel"

HEADER = """; Kernarg layout for this problem (72 bytes, ptrs only, base s[0:1]):
"""


class Cfg:
    def __init__(self, **kw):
        self.nw = 4
        self.nsub = 2
        self.ring = 1
        self.kpol = ""
        self.vpol = ""
        self.order = "inter"
        self.rot = 0
        self.kname = KNAME
        self.nocompute = False
        self.stamp = False
        self.vnext = 256
        self.xmask = 0
        self.prog = False
        self.pd = 0
        self.swap = 0
        self.pd2 = 0
        self.xm2 = 0
        self.late = 0
        self.late2 = 0
        self.dyn = False
        self.ctl = False
        self.theta = 32
        self.lateb = 0
        self.nshard = 4
        self.latek = 0
        self.shfirst = False
        self.spol = ""
        self.ftail = False
        self.opol = ""
        self.st1 = "bar"
        for k, v in kw.items():
            assert hasattr(self, k), k
            setattr(self, k, v)


class Gen:
    def __init__(self, cfg):
        self.c = cfg
        self.L = []

    def e(self, s):
        self.L.append("    " + s)

    def lab(self, s):
        self.L.append(s + ":")

    def cm(self, s):
        self.L.append("    ; " + s)

    def nop(self, n):
        while n > 0:
            k = min(n, 16)
            self.e(f"s_nop {k-1}")
            n -= k

    def gen(self):
        c = self.c
        NW, NSUB, R = c.nw, c.nsub, c.ring
        SLOT = 8192
        TILE = SLOT * NSUB
        NTILE = (1 << 20) // TILE
        NT = NTILE // NW
        RINGB = R * 2 * TILE
        assert RINGB >= 16384
        SH = NW * RINGB
        STAT = SH + 16384
        CTR = STAT + NW * 128
        LDS = CTR + (16 if (c.dyn or c.ctl) else 0)
        assert LDS <= 163840, LDS
        NSLOT = R * 2 * NSUB
        self.LDS = LDS
        GPW = max(1, 4 // NW)

        sKA = 4
        sQ, sK, sV, sKT, sVT, sM, sO = 4, 6, 8, 10, 12, 14, 16
        sDBG = 18
        rK, rV, rX, rO = 20, 24, 28, 32
        sW = 36
        sRing = 37
        sNext = 38
        sT = 39
        sCnt = 40
        sC = 41
        sT2, sT3 = 42, 43
        rM = 44
        sSeg = 50
        sWS = 48
        rD = 52
        sTS = 56

        vLane = 1
        vT = 2
        vDma = 10
        vKa = 14
        vVa = 18
        vM, vL = 26, 27
        vMask = 28
        vAl = 30
        vMc = 31
        vS = 32
        vP = 40
        vE = 44
        vQ = 52
        vV = 84
        vO = 148
        vProg = 230
        vTw, vTr, vTo, vStW, vStR = 212, 216, 220, 221, 222
        vFs = 240
        vX = 212
        vCtrA, vCtrV, vClaim = 231, 232, 233
        vG, vOne, vZero, vFlagR, vFlagW, vFlag = 234, 235, 236, 237, 238, 239
        rG = 72
        sX64, sMode = 76, 77

        e, lab, cm, nop = self.e, self.lab, self.cm, self.nop
        kp = (" " + c.kpol) if c.kpol else ""
        vp = (" " + c.vpol) if c.vpol else ""
        sp = (" " + c.spol) if c.spol else ""

        PD = c.pd if c.pd else NSLOT
        assert 1 <= PD <= NSLOT
        SPT = 2 * NSUB
        SEG = (1 << 20) // NW
        TSTEP = NW * TILE if c.order in ("inter", "inter2") else TILE
        SUBSTEP = NW * SLOT if c.order == "inter2" else SLOT

        def dma_seq(j, dynbase=False):
            tl, p = divmod(j, SPT)
            if dynbase:
                tl = 0
            sub = p % NSUB
            srd, pol = (rK, kp) if p < NSUB else (rV, vp)
            lds = (j % NSLOT) * SLOT
            for h in range(2):
                g = tl * TSTEP + sub * SUBSTEP + h * 4096
                e(f"s_add_u32 s{sT}, s{sNext}, {g}")
                if c.rot:
                    if c.order == "inter":
                        e(f"s_and_b32 s{sT}, s{sT}, {(1<<20)-1}")
                    else:
                        e(f"s_and_b32 s{sT}, s{sT}, {SEG-1}")
                        e(f"s_add_u32 s{sT}, s{sT}, s{sSeg}")
                e(f"s_add_u32 m0, s{sRing}, {lds + h*4096}")
                e("s_nop 0")
                for i in range(4):
                    off = f" offset:{i*1024}" if i else ""
                    e(f"buffer_load_dwordx4 v{vDma+i}, s[{srd}:{srd+3}], s{sT} offen{off}{pol} lds")

        def slot_lds(j):
            return (j % NSLOT) * SLOT

        lab(c.kname)
        e(f"s_cmp_ge_u32 s2, 256")
        e(f"s_cbranch_scc1 L_done")
        if c.xmask:
            e(f"s_getreg_b32 s3, hwreg(HW_REG_XCC_ID, 0, 4)")
            e(f"s_lshr_b32 s3, {c.xmask}, s3")
            e(f"s_and_b32 s3, s3, 1")
            e(f"s_cmp_eq_u32 s3, 0")
            e(f"s_cbranch_scc1 L_done")
        if c.swap:
            e(f"s_xor_b32 s2, s2, {c.swap}")
        e(f"s_load_dwordx16 s[4:19], s[0:1], 0")
        if c.stamp:
            e(f"s_load_dwordx2 s[{sWS}:{sWS+1}], s[0:1], 64")
            e(f"s_memrealtime s[{sTS}:{sTS+1}]")
        cm("lane-dependent addresses")
        e(f"v_and_b32 v{vLane}, 63, v0")
        e(f"v_lshrrev_b32 v{vT}, 6, v0")
        e(f"v_lshrrev_b32 v{vT+1}, 5, v{vLane}")
        e(f"v_readfirstlane_b32 s{sW}, v{vT}")
        e(f"v_and_b32 v{vT+2}, 31, v{vLane}")
        e(f"v_lshlrev_b32 v{vT+3}, 1, v{vT+1}")
        e(f"v_xor_b32 v{vT+2}, v{vT+2}, v{vT+3}")
        e(f"v_lshlrev_b32 v{vT+2}, 4, v{vT+2}")
        e(f"v_lshl_add_u32 v{vDma}, v{vT+1}, 9, v{vT+2}")
        for i in range(1, 4):
            e(f"v_xor_b32 v{vDma+i}, {i*64}, v{vDma}")
        e(f"v_and_b32 v{vT}, 15, v{vLane}")
        e(f"v_lshrrev_b32 v{vT+1}, 4, v{vLane}")
        e(f"v_and_b32 v{vT+2}, 7, v{vT}")
        e(f"v_lshlrev_b32 v{vT+2}, 5, v{vT+2}")
        e(f"v_lshlrev_b32 v{vT+3}, 4, v{vT+1}")
        e(f"v_xor_b32 v{vT+2}, v{vT+2}, v{vT+3}")
        e(f"v_lshl_add_u32 v{vKa}, v{vT}, 9, v{vT+2}")
        for s in range(1, 4):
            e(f"v_xor_b32 v{vKa+s}, {s*64}, v{vKa}")
        e(f"v_lshrrev_b32 v{vT}, 2, v{vLane}")
        e(f"v_and_b32 v{vT+1}, 7, v{vT}")
        e(f"v_lshlrev_b32 v{vT+1}, 5, v{vT+1}")
        e(f"v_and_b32 v{vT+2}, 3, v{vLane}")
        e(f"v_lshlrev_b32 v{vT+2}, 3, v{vT+2}")
        e(f"v_or_b32 v{vT+1}, v{vT+1}, v{vT+2}")
        e(f"v_lshl_add_u32 v{vVa}, v{vT}, 9, v{vT+1}")
        for u in range(1, 8):
            e(f"v_xor_b32 v{vVa+u}, {u*32}, v{vVa}")
        e(f"v_and_b32 v{vT}, 7, v{vLane}")
        e(f"v_lshlrev_b32 v{vT}, 4, v{vT}")
        e(f"v_bfe_u32 v{vT+1}, v{vLane}, 4, 1")
        e(f"v_lshl_add_u32 v{vT+4}, v{vT+1}, 3, v{vT}")
        e(f"s_mul_i32 s{sRing}, s{sW}, {RINGB}")
        if c.order == "inter2":
            e(f"s_mul_i32 s{sNext}, s{sW}, {SLOT}")
        elif c.order == "inter":
            e(f"s_mul_i32 s{sNext}, s{sW}, {TILE}")
            if c.rot:
                e(f"s_mul_i32 s{sT2}, s2, {c.rot*TILE}")
                e(f"s_add_u32 s{sNext}, s{sNext}, s{sT2}")
        else:
            if c.rot:
                e(f"s_mul_i32 s{sSeg}, s{sW}, {SEG}")
                e(f"s_mul_i32 s{sNext}, s2, {c.rot*TILE}")
            else:
                e(f"s_mul_i32 s{sNext}, s{sW}, {SEG}")
        e(f"s_mov_b32 s{sC}, {hex(f32bits(0.0625*math.log2(math.e)))}")
        e(f"s_lshl_b32 s{sT2}, s2, 20")
        e(f"s_lshr_b32 s{sT3}, s2, 12")
        e("s_waitcnt lgkmcnt(0)")
        if c.stamp and c.st1 == "karg":
            e(f"s_memrealtime s[{sTS+2}:{sTS+3}]")
        cm("SRDs")
        e(f"s_add_u32 s{rK}, s{sK}, s{sT2}")
        e(f"s_addc_u32 s{rK+1}, s{sK+1}, s{sT3}")
        e(f"s_mov_b32 s{rK+2}, {1<<20}")
        e(f"s_mov_b32 s{rK+3}, 0x20000")
        e(f"s_add_u32 s{rV}, s{sV}, s{sT2}")
        e(f"s_addc_u32 s{rV+1}, s{sV+1}, s{sT3}")
        e(f"s_mov_b32 s{rV+2}, {1<<20}")
        e(f"s_mov_b32 s{rV+3}, 0x20000")
        if not c.shfirst:
            cm("first K slot")
            dma_seq(0)
        cm("shared region: group 0,1 = Q rows 0-7, 8-15; 2 = tree K; 3 = tree V")
        for gi in range(GPW):
            if GPW == 1:
                e(f"s_and_b32 s{sT2}, s{sW}, 3")
            else:
                e(f"s_mul_i32 s{sT2}, s{sW}, {GPW}")
                e(f"s_add_u32 s{sT2}, s{sT2}, {gi}")
            e(f"s_lshl_b32 s{sT3}, s2, 13")
            e(f"s_add_u32 s{rX}, s{sQ}, s{sT3}")
            e(f"s_addc_u32 s{rX+1}, s{sQ+1}, 0")
            e(f"s_lshl_b32 s{sT3}, s2, 12")
            e(f"s_cmp_eq_u32 s{sT2}, 2")
            e(f"s_cselect_b32 s{rO}, s{sKT}, s{sVT}")
            e(f"s_cselect_b32 s{rO+1}, s{sKT+1}, s{sVT+1}")
            e(f"s_add_u32 s{rO}, s{rO}, s{sT3}")
            e(f"s_addc_u32 s{rO+1}, s{rO+1}, 0")
            e(f"s_cmp_lt_u32 s{sT2}, 2")
            e(f"s_cselect_b32 s{rX}, s{rX}, s{rO}")
            e(f"s_cselect_b32 s{rX+1}, s{rX+1}, s{rO+1}")
            e(f"s_mov_b32 s{rX+2}, 8192")
            e(f"s_cselect_b32 s{rX+2}, s{rX+2}, 4096")
            e(f"s_mov_b32 s{rX+3}, 0x20000")
            e(f"s_cmp_eq_u32 s{sT2}, 1")
            e(f"s_cselect_b32 s{sT}, 4096, 0")
            e(f"s_lshl_b32 s{sT2}, s{sT2}, 12")
            e(f"s_add_u32 m0, s{sT2}, {SH}")
            e("s_nop 0")
            for i in range(4):
                off = f" offset:{i*1024}" if i else ""
                e(f"buffer_load_dwordx4 v{vDma+i}, s[{rX}:{rX+3}], s{sT} offen{off}{sp} lds")
        cm("tree mask (8 bytes per lane)")
        e(f"s_lshr_b32 s{sT2}, s2, 3")
        e(f"s_lshl_b32 s{sT2}, s{sT2}, 7")
        e(f"s_add_u32 s{rM}, s{sM}, s{sT2}")
        e(f"s_addc_u32 s{rM+1}, s{sM+1}, 0")
        e(f"s_mov_b32 s{rM+2}, 128")
        e(f"s_mov_b32 s{rM+3}, 0x20000")
        e(f"buffer_load_dwordx2 v[{vMask}:{vMask+1}], v{vT+4}, s[{rM}:{rM+3}], 0 offen{sp}")
        RPW = 16 // NW
        LPR = 64 // RPW
        NP = 32 // LPR
        lg = int(math.log2(LPR))

        def tail_addresses():
            cm("addresses of the final merge")
            e(f"v_and_b32 v{vT}, 15, v{vLane}")
            e(f"v_lshlrev_b32 v{vT+1}, 3, v{vT}")
            e(f"v_add_u32 v{vStR}, {STAT}, v{vT+1}")
            e(f"s_lshl_b32 s{sT2}, s{sW}, 7")
            e(f"v_add_u32 v{vStW}, s{sT2}, v{vStR}")
            e(f"v_lshrrev_b32 v{vT+1}, 4, v{vLane}")
            e(f"v_lshrrev_b32 v{vT+2}, 1, v{vT+1}")
            e(f"v_and_b32 v{vT+3}, 7, v{vT}")
            e(f"v_xor_b32 v{vT+2}, v{vT+2}, v{vT+3}")
            e(f"v_and_b32 v{vT+1}, 1, v{vT+1}")
            e(f"v_lshl_add_u32 v{vT+2}, v{vT+1}, 4, v{vT+2}")
            e(f"v_lshlrev_b32 v{vT+2}, 4, v{vT+2}")
            e(f"v_lshl_add_u32 v{vT+2}, v{vT}, 10, v{vT+2}")
            e(f"v_add_u32 v{vTw}, s{sRing}, v{vT+2}")
            for j in range(1, 4):
                e(f"v_xor_b32 v{vTw+j}, {j*32}, v{vTw}")
            e(f"v_lshrrev_b32 v{vT}, {lg}, v{vLane}")
            e(f"s_mul_i32 s{sT2}, s{sW}, {RPW}")
            e(f"v_add_u32 v{vT}, s{sT2}, v{vT}")
            e(f"v_and_b32 v{vT+1}, {LPR-1}, v{vLane}")
            e(f"v_and_b32 v{vT+3}, 7, v{vT}")
            if LPR <= 16:
                e(f"v_xor_b32 v{vT+3}, v{vT+3}, v{vT+1}")
                e(f"v_lshlrev_b32 v{vT+3}, 4, v{vT+3}")
            else:
                e(f"v_and_b32 v{vT+4}, 15, v{vT+1}")
                e(f"v_xor_b32 v{vT+3}, v{vT+3}, v{vT+4}")
                e(f"v_lshlrev_b32 v{vT+3}, 4, v{vT+3}")
                e(f"v_lshrrev_b32 v{vT+4}, 4, v{vT+1}")
                e(f"v_lshl_add_u32 v{vT+3}, v{vT+4}, 9, v{vT+3}")
            e(f"v_lshl_add_u32 v{vTr}, v{vT}, 10, v{vT+3}")
            for blk in range(1, (NW * RINGB + 65535) // 65536):
                e(f"v_add_u32 v{vTr+blk}, {blk*65536}, v{vTr}")
            e(f"v_lshlrev_b32 v{vTo}, 4, v{vT+1}")
            e(f"v_lshl_add_u32 v{vTo}, v{vT}, 9, v{vTo}")

        def fast_merge():
            cm("sum the pre-scaled partials of the waves")
            nop(2)
            for t in range(16):
                o_ = ((t >> 2) & 1) * 128 + (t >> 3) * 512
                e(f"ds_write_b128 v{vTw+(t&3)}, v[{vO+4*t}:{vO+4*t+3}] offset:{o_}")
            e("s_waitcnt lgkmcnt(0)")
            e("s_barrier")
            pool = list(range(vV, vV + 64)) + list(range(vO, vO + 64))
            assert NW * NP * 8 <= 128 and LPR >= 8
            for j in range(NP):
                for w in range(NW):
                    base = w * RINGB
                    blk = base // 65536
                    a0 = LPR * j
                    pos = (a0 >> 4) * 32 * 16 + (a0 & 15) * 16
                    for h in range(2):
                        d = pool[(j * NW + w) * 8 + 4 * h]
                        off = base - blk * 65536 + pos + h * 256
                        assert off < 65536
                        e(f"ds_read_b128 v[{d}:{d+3}], v{vTr+blk} offset:{off}")
            outb = [vS, vS + 4, vE, vE + 4]
            for j in range(NP):
                left = (NP - 1 - j) * NW * 2
                e(f"s_waitcnt lgkmcnt({min(15, left)})")
                d0 = pool[j * NW * 8]
                for w in range(1, NW):
                    d = pool[(j * NW + w) * 8]
                    for x in range(0, 8, 2):
                        e(f"v_pk_add_f32 v[{d0+x}:{d0+x+1}], v[{d0+x}:{d0+x+1}], v[{d+x}:{d+x+1}]")
                b = outb[j]
                for x in range(4):
                    e(f"v_cvt_pk_bf16_f32 v{b+x}, v{d0+2*x}, v{d0+2*x+1}")
                off = f" offset:{j*LPR*16}" if j else ""
                e(f"buffer_store_dwordx4 v[{b}:{b+3}], v{vTo}, s[{rO}:{rO+3}], 0 offen{off}{(' ' + c.opol) if c.opol else ''}")

        def stream(PD, sfx, late=0):
            cm("rest of the prefetch window")
            for j in range(0 if c.shfirst else 1, PD):
                dma_seq(j)
            cm("output SRD")
            e(f"s_lshl_b32 s{sT3}, s2, 13")
            e(f"s_add_u32 s{rO}, s{sO}, s{sT3}")
            e(f"s_addc_u32 s{rO+1}, s{sO+1}, 0")
            e(f"s_mov_b32 s{rO+2}, 8192")
            e(f"s_mov_b32 s{rO+3}, 0x20000")
            cm("state init")
            for i in range(64):
                e(f"v_mov_b32 v{vO+i}, 0")
            e(f"v_mov_b32 v{vM}, 0xff800000")
            e(f"v_mov_b32 v{vL}, 0")
            if c.ctl:
                sh_per = 256 // c.nshard
                e(f"s_lshr_b32 s{sT2}, s2, 3")
                e(f"s_and_b32 s{sT2}, s{sT2}, {c.nshard-1}")
                e(f"s_lshl_b32 s{sT2}, s{sT2}, {6 if c.nshard <= 4 else 5}")
                e(f"s_add_u32 s{rG}, s{sDBG}, s{sT2}")
                e(f"s_addc_u32 s{rG+1}, s{sDBG+1}, 0")
                e(f"s_cmp_eq_u32 s{sW}, 0")
                e(f"s_cselect_b32 s{rG+2}, 4, 0")
                e(f"s_mov_b32 s{rG+3}, 0x20000")
                e(f"s_cselect_b32 s{sT2}, 0, 4")
                e(f"s_add_u32 s{sT2}, s{sT2}, {CTR}")
                e(f"v_mov_b32 v{vFlagW}, s{sT2}")
                e(f"v_mov_b32 v{vFlagR}, {CTR}")
                e(f"v_mov_b32 v{vG}, 0")
                e(f"v_mov_b32 v{vOne}, 1")
                e(f"v_mov_b32 v{vZero}, 0")
                e(f"ds_write_b32 v{vFlagR}, v{vOne}")
                e(f"s_mov_b32 s{sX64}, 0")
            if c.dyn:
                e(f"v_mov_b32 v{vCtrA}, {CTR}")
                e(f"v_mov_b32 v{vCtrV}, {NW}")
                e(f"ds_write_b32 v{vCtrA}, v{vCtrV}")
                e(f"v_mov_b32 v{vCtrV}, 1")
            wait0 = min(63, (PD if c.shfirst else PD - 1) * 8)
            e(f"s_waitcnt vmcnt({wait0}) lgkmcnt(0)" if (c.dyn or c.ctl) else f"s_waitcnt vmcnt({wait0})")
            e("s_barrier")
            if c.stamp and c.st1 == "bar":
                e(f"s_memrealtime s[{sTS+2}:{sTS+3}]")
            cm("Q fragments")
            for s in range(4):
                e(f"v_add_u32 v{vX+s}, {SH}, v{vKa+s}")
            for s in range(8):
                e(f"ds_read_b128 v[{vQ+4*s}:{vQ+4*s+3}], v{vX+(s&3)} offset:{(s>>2)*256}")

            def softmax_pv(nS, tree=False, final=False):
                if nS == 8:
                    e(f"v_max3_f32 v{vT}, v{vS}, v{vS+1}, v{vS+2}")
                    e(f"v_max3_f32 v{vT+1}, v{vS+3}, v{vS+4}, v{vS+5}")
                    e(f"v_max3_f32 v{vT}, v{vT}, v{vS+6}, v{vS+7}")
                    e(f"v_max_f32 v{vT}, v{vT}, v{vT+1}")
                else:
                    e(f"v_max3_f32 v{vT}, v{vS}, v{vS+1}, v{vS+2}")
                    e(f"v_max_f32 v{vT}, v{vT}, v{vS+3}")
                e(f"v_mov_b32 v{vT+1}, v{vT}")
                nop(2)
                e(f"v_permlane32_swap_b32 v{vT}, v{vT+1}")
                nop(1)
                e(f"v_max_f32 v{vT}, v{vT}, v{vT+1}")
                e(f"v_mov_b32 v{vT+1}, v{vT}")
                nop(2)
                e(f"v_permlane16_swap_b32 v{vT}, v{vT+1}")
                nop(1)
                e(f"v_max3_f32 v{vT}, v{vT}, v{vT+1}, v{vM}")
                e(f"v_mul_f32 v{vMc}, s{sC}, v{vT}")
                e(f"v_fma_f32 v{vAl}, v{vM}, s{sC}, -v{vMc}")
                e(f"v_mov_b32 v{vM}, v{vT}")
                for i in range(nS):
                    e(f"v_fma_f32 v{vE+i}, v{vS+i}, s{sC}, -v{vMc}")
                e(f"v_exp_f32 v{vAl}, v{vAl}")
                for i in range(nS):
                    e(f"v_exp_f32 v{vE+i}, v{vE+i}")
                nop(1)
                e(f"v_mul_f32 v{vL}, v{vL}, v{vAl}")
                if not final:
                    for i in range(0, nS, 2):
                        e(f"v_cvt_pk_bf16_f32 v{vP+i//2}, v{vE+i}, v{vE+i+1}")
                e(f"v_add_f32 v{vT}, v{vE}, v{vE+1}")
                e(f"v_add_f32 v{vT+1}, v{vE+2}, v{vE+3}")
                if nS == 8:
                    e(f"v_add_f32 v{vT+2}, v{vE+4}, v{vE+5}")
                    e(f"v_add_f32 v{vT+3}, v{vE+6}, v{vE+7}")
                    e(f"v_add_f32 v{vT}, v{vT}, v{vT+2}")
                    e(f"v_add_f32 v{vT+1}, v{vT+1}, v{vT+3}")
                e(f"v_add_f32 v{vT}, v{vT}, v{vT+1}")
                e(f"v_add_f32 v{vL}, v{vL}, v{vT}")
                if final:
                    cm("final statistics: l summed over the lane groups, (m, l) exchanged between the waves")
                    e(f"v_mov_b32 v{vT+1}, v{vL}")
                    nop(2)
                    e(f"v_permlane32_swap_b32 v{vL}, v{vT+1}")
                    nop(1)
                    e(f"v_add_f32 v{vL}, v{vL}, v{vT+1}")
                    e(f"v_mov_b32 v{vT+1}, v{vL}")
                    nop(2)
                    e(f"v_permlane16_swap_b32 v{vL}, v{vT+1}")
                    nop(1)
                    e(f"v_add_f32 v{vL}, v{vL}, v{vT+1}")
                    e(f"ds_write_b64 v{vStW}, v[{vM}:{vM+1}]")
                    e("s_waitcnt lgkmcnt(0)")
                    e("s_barrier")
                    st = vS
                    for w in range(NW):
                        e(f"ds_read_b64 v[{vFs+2*w}:{vFs+2*w+1}], v{vStR} offset:{w*128}")
                    e("s_waitcnt lgkmcnt(0)")
                    e(f"v_max_f32 v{vT}, v{vFs}, v{vFs+2}")
                    for w in range(2, NW):
                        e(f"v_max_f32 v{vT}, v{vT}, v{vFs+2*w}")
                    e(f"v_mul_f32 v{vMc}, s{sC}, v{vT}")
                    for w in range(NW):
                        e(f"v_fma_f32 v{vFs+2*w}, v{vFs+2*w}, s{sC}, -v{vMc}")
                    e(f"v_fma_f32 v{vT+1}, v{vM}, s{sC}, -v{vMc}")
                    for w in range(NW):
                        e(f"v_exp_f32 v{vFs+2*w}, v{vFs+2*w}")
                    e(f"v_exp_f32 v{vT+1}, v{vT+1}")
                    nop(1)
                    e(f"v_mul_f32 v{vT}, v{vFs}, v{vFs+1}")
                    for w in range(1, NW):
                        e(f"v_fma_f32 v{vT}, v{vFs+2*w}, v{vFs+2*w+1}, v{vT}")
                    e(f"v_rcp_f32 v{vT}, v{vT}")
                    nop(1)
                    e(f"v_mul_f32 v{vT}, v{vT}, v{vT+1}")
                    e(f"v_mul_f32 v{vAl}, v{vAl}, v{vT}")
                    for i in range(nS):
                        e(f"v_mul_f32 v{vE+i}, v{vE+i}, v{vT}")
                    for i in range(0, nS, 2):
                        e(f"v_cvt_pk_bf16_f32 v{vP+i//2}, v{vE+i}, v{vE+i+1}")
                for i in range(0, 64, 2):
                    e(f"v_pk_mul_f32 v[{vO+i}:{vO+i+1}], v[{vO+i}:{vO+i+1}], v[{vAl}:{vAl+1}] op_sel_hi:[1,0]")

            def k_reads(off, dst):
                for s in range(8):
                    o = off + (s >> 2) * 256
                    e(f"ds_read_b128 v[{dst+4*s}:{dst+4*s+3}], v{vKa+(s&3)} offset:{o}")

            def qk_mfma(src, acc):
                for s in range(8):
                    cin = "0" if s == 0 else f"v[{acc}:{acc+3}]"
                    e(f"v_mfma_f32_16x16x32_bf16 v[{acc}:{acc+3}], v[{src+4*s}:{src+4*s+3}], v[{vQ+4*s}:{vQ+4*s+3}], {cin}")

            def v_reads(off, sub, addr=vVa):
                for t in range(16):
                    o = off + (t >> 3) * 256
                    d = vV + 4 * t + 2 * sub
                    e(f"ds_read_b64_tr_b16 v[{d}:{d+1}], v{addr+(t&7)} offset:{o}")

            def pv_mfma(k32):
                for t in range(16):
                    o = vO + 4 * t
                    if k32:
                        e(f"v_mfma_f32_16x16x32_bf16 v[{o}:{o+3}], v[{vV+4*t}:{vV+4*t+3}], v[{vP}:{vP+3}], v[{o}:{o+3}]")
                    else:
                        e(f"v_mfma_f32_16x16x16_bf16 v[{o}:{o+3}], v[{vV+4*t}:{vV+4*t+1}], v[{vP}:{vP+1}], v[{o}:{o+3}]")

            cm("tree tile: wave 0 only")
            e(f"s_cmp_lg_u32 s{sW}, 0")
            e(f"s_cbranch_scc1 L_notree{sfx}")
            if not c.nocompute:
                for s in range(4):
                    e(f"v_add_u32 v{vX+s}, {SH+8192}, v{vKa+s}")
                for s in range(8):
                    e(f"ds_read_b128 v[{vV+4*s}:{vV+4*s+3}], v{vX+(s&3)} offset:{(s>>2)*256}")
                e("s_waitcnt lgkmcnt(0)")
                qk_mfma(vV, vS)
                for u in range(8):
                    e(f"v_and_b32 v{vX+u}, 0xfff, v{vVa+u}")
                for u in range(8):
                    e(f"v_add_u32 v{vX+u}, {SH+12288}, v{vX+u}")
                e(f"v_lshlrev_b32 v{vE}, 16, v{vMask}")
                e(f"v_and_b32 v{vE+1}, 0xffff0000, v{vMask}")
                e(f"v_lshlrev_b32 v{vE+2}, 16, v{vMask+1}")
                e(f"v_and_b32 v{vE+3}, 0xffff0000, v{vMask+1}")
                e(f"s_mov_b32 s{sT2}, {hex(f32bits(-1.6e10))}")
                for i in range(4):
                    e(f"v_sub_f32 v{vE+i}, 1.0, v{vE+i}")
                v_reads(0, 0, addr=vX)
                e(f"v_cmp_gt_u32 vcc, 32, v{vLane}")
                e(f"v_mov_b32 v{vT+3}, 0xff800000")
                nop(4)
                for i in range(4):
                    e(f"v_fma_f32 v{vS+i}, v{vE+i}, s{sT2}, v{vS+i}")
                for i in range(4):
                    e(f"v_cndmask_b32 v{vS+i}, v{vT+3}, v{vS+i}, vcc")
                softmax_pv(4, tree=True)
                e("s_waitcnt lgkmcnt(0)")
                pv_mfma(False)
            lab(f"L_notree{sfx}")
            if c.ftail:
                tail_addresses()
            cm("ring-relative addresses")
            for s in range(4):
                e(f"v_add_u32 v{vKa+s}, s{sRing}, v{vKa+s}")
            for u in range(8):
                e(f"v_add_u32 v{vVa+u}, s{sRing}, v{vVa+u}")
            e("s_waitcnt lgkmcnt(0)")

            def body(last):
                for j in range(NSLOT):
                    p = j % SPT
                    sub = p % NSUB
                    after = min(PD - 1, NSLOT - 1 - j) if last else PD - 1
                    if c.latek and p == 1:
                        after = 0
                    e(f"s_waitcnt vmcnt({min(63, after*8)})")
                    if not c.nocompute:
                        if p < NSUB:
                            k_reads(slot_lds(j), vV + 32 * sub)
                        else:
                            v_reads(slot_lds(j), sub)
                        e("s_waitcnt lgkmcnt(0)")
                    issue = (not last) or j + PD < NSLOT
                    kissue = c.latek and p == 1 and ((not last) or j - 1 + PD < NSLOT)
                    if c.latek and p == 0:
                        issue = False
                    if kissue and c.latek == 2:
                        dma_seq(j - 1 + PD)
                    if issue and not (late >> p) & 1:
                        dma_seq(j + PD)
                    if not c.nocompute:
                        if p < NSUB:
                            qk_mfma(vV + 32 * sub, vS + 4 * sub)
                            if p == NSUB - 1:
                                nop(8)
                                softmax_pv(4 * NSUB, final=(c.ftail and last and j // SPT == R - 1))
                        elif p == SPT - 1:
                            pv_mfma(NSUB == 2)
                    if kissue and c.latek == 3:
                        assert (late >> p) & 1
                        dma_seq(j - 1 + PD)
                    if issue and (late >> p) & 1:
                        dma_seq(j + PD)

            if c.dyn:
                assert R == 1 and PD == NSLOT and not c.rot and c.order == "inter"

                def compute(p):
                    sub = p % NSUB
                    if p < NSUB:
                        qk_mfma(vV + 32 * sub, vS + 4 * sub)
                        if p == NSUB - 1:
                            nop(8)
                            softmax_pv(4 * NSUB)
                    elif p == SPT - 1:
                        pv_mfma(NSUB == 2)

                def reads(p):
                    sub = p % NSUB
                    if p < NSUB:
                        k_reads(slot_lds(p), vV + 32 * sub)
                    else:
                        v_reads(slot_lds(p), sub)
                    e("s_waitcnt lgkmcnt(0)")

                if c.prog:
                    e(f"s_mov_b32 s{sCnt}, 0")
                lab(f"L_loop{sfx}")
                e("s_mov_b64 exec, 1")
                e(f"ds_add_rtn_u32 v{vClaim}, v{vCtrA}, v{vCtrV}")
                e("s_mov_b64 exec, -1")
                for p in range(SPT):
                    e(f"s_waitcnt vmcnt({(SPT-1)*8})")
                    reads(p)
                    if p == 0:
                        e(f"v_readfirstlane_b32 s{sNext}, v{vClaim}")
                        e(f"s_cmp_ge_u32 s{sNext}, {NTILE}")
                        e(f"s_cbranch_scc1 L_last{sfx}")
                        e(f"s_mul_i32 s{sNext}, s{sNext}, {TILE}")
                    dma_seq(p, dynbase=True)
                    compute(p)
                if c.prog:
                    e(f"s_memrealtime s[{sTS+8}:{sTS+9}]")
                    e("s_waitcnt lgkmcnt(0)")
                    e(f"s_mov_b32 m0, s{sCnt}")
                    e(f"s_add_u32 s{sCnt}, s{sCnt}, 1")
                    e(f"v_writelane_b32 v{vProg}, s{sTS+8}, m0")
                e(f"s_branch L_loop{sfx}")
                lab(f"L_last{sfx}")
                for p in range(SPT):
                    if p > 0:
                        e(f"s_waitcnt vmcnt({(SPT-1-p)*8})")
                        reads(p)
                    compute(p)
                return
            self.uid = getattr(self, "uid", 0)

            def body_ctl(last):
                assert PD == 1 and R == 1
                for j in range(NSLOT):
                    p = j % SPT
                    sub = p % NSUB
                    e(f"s_waitcnt vmcnt({1 if j == 0 else 0})")
                    if p < NSUB:
                        k_reads(slot_lds(j), vV + 32 * sub)
                    else:
                        v_reads(slot_lds(j), sub)
                    e(f"ds_read_b32 v{vFlag}, v{vFlagR}")
                    if j == 1:
                        e(f"v_readfirstlane_b32 s{sT2}, v{vG}")
                        e(f"s_sub_u32 s{sT2}, s{sX64}, s{sT2}")
                        e(f"s_cmp_lt_i32 s{sT2}, {c.theta}")
                        e(f"s_cselect_b32 s{sT2}, 1, 0")
                        e(f"v_mov_b32 v{vT}, s{sT2}")
                        e(f"ds_write_b32 v{vFlagW}, v{vT}")
                    e("s_waitcnt lgkmcnt(0)")
                    issue = (not last) or j + PD < NSLOT
                    la, lb = (late >> p) & 1, (c.lateb >> p) & 1
                    self.uid += 1
                    u = self.uid
                    if issue and la != lb:
                        e(f"v_readfirstlane_b32 s{sMode}, v{vFlag}")
                        e(f"s_cmp_eq_u32 s{sMode}, {0 if la else 1}")
                        e(f"s_cbranch_scc1 L_e{u}")
                        dma_seq(j + PD)
                        lab(f"L_e{u}")
                    elif issue and not la:
                        dma_seq(j + PD)
                    if p < NSUB:
                        qk_mfma(vV + 32 * sub, vS + 4 * sub)
                        if p == NSUB - 1:
                            nop(8)
                            softmax_pv(4 * NSUB)
                    elif p == SPT - 1:
                        pv_mfma(NSUB == 2)
                    if issue and la != lb:
                        e(f"s_cmp_lg_u32 s{sMode}, {0 if la else 1}")
                        e(f"s_cbranch_scc1 L_l{u}")
                        dma_seq(j + PD)
                        lab(f"L_l{u}")
                    elif issue and la:
                        dma_seq(j + PD)
                if not last:
                    e("s_mov_b64 exec, 1")
                    e(f"v_mov_b32 v{vG}, 1")
                    e(f"buffer_atomic_add v{vG}, v{vZero}, s[{rG}:{rG+3}], 0 offen sc0")
                    e("s_mov_b64 exec, -1")
                    e(f"s_add_u32 s{sX64}, s{sX64}, {256 // c.nshard}")

            if c.ctl:
                body = body_ctl
            nbody = NT // R
            assert nbody * R == NT
            e(f"s_mov_b32 s{sCnt}, {nbody-1}")
            lab(f"L_loop{sfx}")
            body(False)
            if c.prog:
                e(f"s_memrealtime s[{sTS+8}:{sTS+9}]")
                e("s_waitcnt lgkmcnt(0)")
                e(f"s_sub_u32 s{sT2}, {nbody-1}, s{sCnt}")
                e(f"s_mov_b32 m0, s{sT2}")
                e("s_nop 1")
                e(f"v_writelane_b32 v{vProg}, s{sTS+8}, m0")
            e(f"s_add_u32 s{sNext}, s{sNext}, {R*TSTEP}")
            e(f"s_sub_u32 s{sCnt}, s{sCnt}, 1")
            e(f"s_cmp_lg_u32 s{sCnt}, 0")
            e(f"s_cbranch_scc1 L_loop{sfx}")
            body(True)

        if c.pd2:
            e(f"s_getreg_b32 s{sT2}, hwreg(HW_REG_XCC_ID, 0, 4)")
            e(f"s_lshr_b32 s{sT2}, {c.xm2}, s{sT2}")
            e(f"s_and_b32 s{sT2}, s{sT2}, 1")
            e(f"s_cmp_eq_u32 s{sT2}, 1")
            e("s_cbranch_scc1 L_alt")
            stream(PD, "", c.late)
            e("s_branch L_merge")
            lab("L_alt")
            stream(c.pd2, "_b", c.late2)
            lab("L_merge")
        else:
            stream(PD, "", c.late)
        if c.stamp:
            e(f"s_memrealtime s[{sTS+4}:{sTS+5}]")
        def slow_merge():
            cm("merge the per-wave partials")
            e(f"v_mov_b32 v{vT+1}, v{vL}")
            nop(2)
            e(f"v_permlane32_swap_b32 v{vL}, v{vT+1}")
            nop(1)
            e(f"v_add_f32 v{vL}, v{vL}, v{vT+1}")
            e(f"v_mov_b32 v{vT+1}, v{vL}")
            nop(2)
            e(f"v_permlane16_swap_b32 v{vL}, v{vT+1}")
            nop(1)
            e(f"v_add_f32 v{vL}, v{vL}, v{vT+1}")
            e(f"v_and_b32 v{vT}, 15, v{vLane}")
            e(f"s_lshl_b32 s{sT2}, s{sW}, 7")
            e(f"s_add_u32 s{sT2}, s{sT2}, {STAT}")
            e(f"v_lshlrev_b32 v{vT+1}, 3, v{vT}")
            e(f"v_add_u32 v{vT+1}, s{sT2}, v{vT+1}")
            e(f"ds_write_b64 v{vT+1}, v[{vM}:{vM+1}]")
            e(f"v_lshrrev_b32 v{vT+1}, 4, v{vLane}")
            e(f"v_lshrrev_b32 v{vT+2}, 1, v{vT+1}")
            e(f"v_and_b32 v{vT+3}, 7, v{vT}")
            e(f"v_xor_b32 v{vT+2}, v{vT+2}, v{vT+3}")
            e(f"v_and_b32 v{vT+1}, 1, v{vT+1}")
            e(f"v_lshl_add_u32 v{vT+2}, v{vT+1}, 4, v{vT+2}")
            e(f"v_lshlrev_b32 v{vT+2}, 4, v{vT+2}")
            e(f"v_lshl_add_u32 v{vT+2}, v{vT}, 10, v{vT+2}")
            e(f"v_add_u32 v{vX}, s{sRing}, v{vT+2}")
            for j in range(1, 4):
                e(f"v_xor_b32 v{vX+j}, {j*32}, v{vX}")
            nop(4)
            for t in range(16):
                o_ = ((t >> 2) & 1) * 128 + (t >> 3) * 512
                e(f"ds_write_b128 v{vX+(t&3)}, v[{vO+4*t}:{vO+4*t+3}] offset:{o_}")
            e("s_waitcnt lgkmcnt(0)")
            e("s_barrier")
            RPW = 16 // NW
            LPR = 64 // RPW
            NP = 32 // LPR
            lg = int(math.log2(LPR))
            e(f"v_lshrrev_b32 v{vT}, {lg}, v{vLane}")
            e(f"s_mul_i32 s{sT2}, s{sW}, {RPW}")
            e(f"v_add_u32 v{vT}, s{sT2}, v{vT}")
            e(f"v_and_b32 v{vT+1}, {LPR-1}, v{vLane}")
            e(f"v_lshlrev_b32 v{vT+2}, 3, v{vT}")
            e(f"v_add_u32 v{vT+2}, {STAT}, v{vT+2}")
            vSt = vE
            vSt = vQ
            for w in range(NW):
                e(f"ds_read_b64 v[{vSt+2*w}:{vSt+2*w+1}], v{vT+2} offset:{w*128}")
            e(f"v_and_b32 v{vT+3}, 7, v{vT}")
            if LPR <= 16:
                e(f"v_xor_b32 v{vT+3}, v{vT+3}, v{vT+1}")
                e(f"v_lshlrev_b32 v{vT+3}, 4, v{vT+3}")
            else:
                e(f"v_and_b32 v{vT+4}, 15, v{vT+1}")
                e(f"v_xor_b32 v{vT+3}, v{vT+3}, v{vT+4}")
                e(f"v_lshlrev_b32 v{vT+3}, 4, v{vT+3}")
                e(f"v_lshrrev_b32 v{vT+4}, 4, v{vT+1}")
                e(f"v_lshl_add_u32 v{vT+3}, v{vT+4}, 9, v{vT+3}")
            e(f"v_lshl_add_u32 v{vX}, v{vT}, 10, v{vT+3}")
            pool = list(range(vV, vV + 64)) + list(range(vO, vO + 64))
            need = NW * NP * 8
            assert need <= 128
            addr_hi = {}
            for w in range(NW):
                base = w * RINGB
                blk = base // 65536
                if blk not in addr_hi:
                    a = vX + 1 + blk
                    e(f"v_add_u32 v{a}, {blk*65536}, v{vX}")
                    addr_hi[blk] = a
            for w in range(NW):
                base = w * RINGB
                blk = base // 65536
                for j in range(NP):
                    a0 = LPR * j
                    pos = (a0 >> 4) * 32 * 16 + (a0 & 15) * 16
                    for h in range(2):
                        d = pool[(w * NP + j) * 8 + 4 * h]
                        off = base - blk * 65536 + pos + h * 256
                        assert off < 65536
                        e(f"ds_read_b128 v[{d}:{d+3}], v{addr_hi[blk]} offset:{off}")
            e(f"v_lshlrev_b32 v{vT+5}, 4, v{vT+1}")
            e(f"v_lshl_add_u32 v{vT+5}, v{vT}, 9, v{vT+5}")
            e(f"s_waitcnt lgkmcnt({min(15, NW*NP*2)})")
            e(f"v_mov_b32 v{vT}, v{vSt}")
            for w in range(1, NW):
                e(f"v_max_f32 v{vT}, v{vT}, v{vSt+2*w}")
            e(f"v_mul_f32 v{vMc}, s{sC}, v{vT}")
            for w in range(NW):
                e(f"v_fma_f32 v{vSt+2*w}, v{vSt+2*w}, s{sC}, -v{vMc}")
            for w in range(NW):
                e(f"v_exp_f32 v{vSt+2*w}, v{vSt+2*w}")
            nop(1)
            e(f"v_mul_f32 v{vT}, v{vSt}, v{vSt+1}")
            for w in range(1, NW):
                e(f"v_fma_f32 v{vT}, v{vSt+2*w}, v{vSt+2*w+1}, v{vT}")
            e(f"v_rcp_f32 v{vT}, v{vT}")
            nop(1)
            for w in range(NW):
                e(f"v_mul_f32 v{vSt+2*w}, v{vSt+2*w}, v{vT}")
            e("s_waitcnt lgkmcnt(0)")
            for j in range(NP):
                for x in range(8):
                    d0 = pool[j * 8 + x]
                    e(f"v_mul_f32 v{d0}, v{d0}, v{vSt}")
                for w in range(1, NW):
                    for x in range(8):
                        d0 = pool[j * 8 + x]
                        d = pool[(w * NP + j) * 8 + x]
                        e(f"v_fma_f32 v{d0}, v{d}, v{vSt+2*w}, v{d0}")
                for x in range(4):
                    e(f"v_cvt_pk_bf16_f32 v{vS+4*(j&1)+x}, v{pool[j*8+2*x]}, v{pool[j*8+2*x+1]}")
                b = vS + 4 * (j & 1)
                off = f" offset:{j*LPR*16}" if j else ""
                e(f"buffer_store_dwordx4 v[{b}:{b+3}], v{vT+5}, s[{rO}:{rO+3}], 0 offen{off}{(' ' + c.opol) if c.opol else ''}")
                if NP > 2:
                    nop(2)

        if c.ftail:
            fast_merge()
        else:
            slow_merge()
        if c.stamp:
            e("s_waitcnt vmcnt(0)")
            e(f"s_memrealtime s[{sTS+6}:{sTS+7}]")
            e(f"s_getreg_b32 s{sT2}, hwreg(HW_REG_XCC_ID)")
            e(f"s_getreg_b32 s{sT3}, hwreg(HW_REG_HW_ID)")
            e("s_waitcnt lgkmcnt(0)")
            e(f"s_mov_b32 s{rD}, s{sWS}")
            e(f"s_mov_b32 s{rD+1}, s{sWS+1}")
            e(f"s_mov_b32 s{rD+2}, {256*NW*64}")
            e(f"s_mov_b32 s{rD+3}, 0x20000")
            e(f"s_mul_i32 s{sT}, s2, {NW*64}")
            e(f"s_lshl_b32 s{sCnt}, s{sW}, 6")
            e(f"s_add_u32 s{sT}, s{sT}, s{sCnt}")
            for i in range(8):
                e(f"v_mov_b32 v{vV+i}, s{sTS+i}")
            e(f"v_mov_b32 v{vV+8}, s{sT2}")
            e(f"v_mov_b32 v{vV+9}, s{sT3}")
            e(f"v_mov_b32 v{vV+10}, 0")
            e(f"v_mov_b32 v{vV+11}, 0")
            if c.prog:
                e(f"s_mov_b32 s{rD+2}, {(1<<20) + 256*NW*256}")
                e(f"s_mul_i32 s{sT3}, s2, {NW*256}")
                e(f"s_lshl_b32 s{sCnt}, s{sW}, 8")
                e(f"s_add_u32 s{sT3}, s{sT3}, s{sCnt}")
                e(f"s_add_u32 s{sT3}, s{sT3}, {1<<20}")
                e(f"v_lshlrev_b32 v{vT}, 2, v{vLane}")
                e(f"buffer_store_dword v{vProg}, v{vT}, s[{rD}:{rD+3}], s{sT3} offen")
                nop(2)
            e(f"v_mov_b32 v{vT}, 0")
            e(f"v_cmp_eq_u32 vcc, 0, v{vLane}")
            nop(2)
            e(f"s_and_saveexec_b64 s[{sTS}:{sTS+1}], vcc")
            e(f"buffer_store_dwordx4 v[{vV}:{vV+3}], v{vT}, s[{rD}:{rD+3}], s{sT} offen")
            e(f"buffer_store_dwordx4 v[{vV+4}:{vV+7}], v{vT}, s[{rD}:{rD+3}], s{sT} offen offset:16")
            e(f"buffer_store_dwordx4 v[{vV+8}:{vV+11}], v{vT}, s[{rD}:{rD+3}], s{sT} offen offset:32")
        lab("L_done")
        e("s_endpgm")

        body = "\n".join(self.L)
        out = HEADER
        out += f"; @launch grid=(256,1,1) block=({NW*64},1,1) lds={LDS}\n"
        out += f""".amdgcn_target "amdgcn-amd-amdhsa--gfx950"
.text
.globl {c.kname}
.p2align 8
.type {c.kname},@function
{body}
.section .rodata,"a"
.p2align 6
.amdhsa_kernel {c.kname}
  .amdhsa_next_free_vgpr {c.vnext}
  .amdhsa_next_free_sgpr 102
  .amdhsa_accum_offset {c.vnext}
  .amdhsa_group_segment_fixed_size 0
  .amdhsa_kernarg_size 72
  .amdhsa_user_sgpr_count 2
  .amdhsa_user_sgpr_kernarg_segment_ptr 1
  .amdhsa_system_sgpr_workgroup_id_x 1
.end_amdhsa_kernel
"""
        return out


def f32bits(x):
    import struct
    return struct.unpack("<I", struct.pack("<f", x))[0]


def parse(args):
    kw = {}
    for a in args:
        k, v = a.split("=", 1)
        if k in ("nw", "nsub", "ring", "rot", "vnext", "pd", "xmask", "swap", "pd2", "xm2", "late", "late2", "theta", "lateb", "nshard", "latek"):
            v = int(v)
        elif k in ("nocompute", "stamp", "prog", "dyn", "ctl", "shfirst", "ftail"):
            v = bool(int(v))
        else:
            v = v.replace("+", " ")
        kw[k] = v
    return Cfg(**kw)


if __name__ == "__main__":
    out = sys.argv[1]
    cfg = parse(sys.argv[2:])
    open(out, "w").write(Gen(cfg).gen())
```
